```python
import torch

def _softmax(x, axis=-1):
    return torch.softmax(x, dim=axis)
def _gelu(x):
    return torch.nn.functional.gelu(x, approximate="tanh")
def _silu(x):
    return torch.nn.functional.silu(x)
def _sigmoid(x):
    return torch.sigmoid(x)
def _layernorm(x, axis=-1, eps=1e-5):
    m = x.mean(dim=axis, keepdim=True)
    v = x.var(dim=axis, keepdim=True, unbiased=False)
    return (x - m) / torch.sqrt(v + eps)
def _scatter_add(tgt, idx, src, axis=0):
    return tgt.clone().index_add_(axis, idx, src)
def _segment_sum(src, seg, n):
    out = torch.zeros((n,) + src.shape[1:], dtype=src.dtype)
    return out.index_add_(0, seg, src)
def _pad(x, pw):
    flat = tuple(v for pair in reversed(pw) for v in pair)
    return torch.nn.functional.pad(x, flat)

kernel_name = 'gated_mix__sliding_block_cached__sliding_block_cached__decode'

def setup_inputs():

    _w = (lambda a: (lambda t: t.to(torch.bfloat16) if t.is_floating_point() else t)(torch.as_tensor(a)))
    def _A_setup():
        B, Sq, D = 8, 1, 448
        Hq, Hkv, Sk, Dh = 16, 8, 4096, 256
        assert Hq % Hkv == 0, (Hq, Hkv)
        return {
            "x": _w((lambda *s: torch.randn(*s, dtype=torch.bfloat16) * 0.05)(B, Sq, D)),
            "k_cache": _w((lambda *s: torch.randn(*s, dtype=torch.bfloat16) * 3.2)(B, Hkv, Sk, Dh)),
            "v_cache": _w((lambda *s: torch.randn(*s, dtype=torch.bfloat16) * 0.05)(B, Hkv, Sk, Dh)),
            "wq": _w((lambda *s: torch.randn(*s, dtype=torch.bfloat16) * 3.2)(D, Hq * Dh) * (D ** -0.5)),
            "wo": _w((lambda *s: torch.randn(*s, dtype=torch.bfloat16) * 0.05)(Hq * Dh, D) * ((Hq * Dh) ** -0.5)),
        }
    _A_in = _A_setup()

    def _B_setup():
        B, Sq, D = 8, 1, 448
        Hq, Hkv, Sk, Dh = 16, 8, 4096, 256
        assert Hq % Hkv == 0, (Hq, Hkv)
        return {
            "x": _w((lambda *s: torch.randn(*s, dtype=torch.bfloat16) * 0.05)(B, Sq, D)),
            "k_cache": _w((lambda *s: torch.randn(*s, dtype=torch.bfloat16) * 3.2)(B, Hkv, Sk, Dh)),
            "v_cache": _w((lambda *s: torch.randn(*s, dtype=torch.bfloat16) * 0.05)(B, Hkv, Sk, Dh)),
            "wq": _w((lambda *s: torch.randn(*s, dtype=torch.bfloat16) * 3.2)(D, Hq * Dh) * (D ** -0.5)),
            "wo": _w((lambda *s: torch.randn(*s, dtype=torch.bfloat16) * 0.05)(Hq * Dh, D) * ((Hq * Dh) ** -0.5)),
        }
    _B_in = _B_setup()

    return {
        "A_x": _A_in["x"],
        "A_k_cache": _A_in["k_cache"],
        "A_v_cache": _A_in["v_cache"],
        "A_wq": _A_in["wq"],
        "A_wo": _A_in["wo"],
        "B_x": _B_in["x"],
        "B_k_cache": _B_in["k_cache"],
        "B_v_cache": _B_in["v_cache"],
        "B_wq": _B_in["wq"],
        "B_wo": _B_in["wo"],
        "gate_w": _w((lambda *s: torch.randn(*s, dtype=torch.bfloat16) * 0.05)(448) * 16.0),
    }

def reference(A_x, A_k_cache, A_v_cache, A_wq, A_wo, B_x, B_k_cache, B_v_cache, B_wq, B_wo, gate_w):
    def _A_ref(x, k_cache, v_cache, wq, wo):
        B, Sq, D = x.shape
        Hq, Dh = 16, 256
        Hkv, Sk = k_cache.shape[1], k_cache.shape[2]
        W = min(4096, max(256, Sk // 4))
        rep = Hq // Hkv
        q = (lambda x, *d: x.permute(*d))((x @ wq).reshape(B, Sq, Hq, Dh), 0, 2, 1, 3)
        k = (lambda x, n, axis: torch.repeat_interleave(x, n, dim=axis))(k_cache[:, :, Sk - W:, :], rep, axis=1)
        v = (lambda x, n, axis: torch.repeat_interleave(x, n, dim=axis))(v_cache[:, :, Sk - W:, :], rep, axis=1)
        scores = torch.einsum("bhqd,bhkd->bhqk", q, k) * (Dh ** -0.5)
        p = _softmax(scores, axis=-1)
        o = torch.einsum("bhqk,bhkd->bhqd", p, v)
        return (lambda x, *d: x.permute(*d))(o, 0, 2, 1, 3).reshape(B, Sq, Hq * Dh) @ wo

    def _B_ref(x, k_cache, v_cache, wq, wo):
        B, Sq, D = x.shape
        Hq, Dh = 16, 256
        Hkv, Sk = k_cache.shape[1], k_cache.shape[2]
        W = min(4096, max(256, Sk // 4))
        rep = Hq // Hkv
        q = (lambda x, *d: x.permute(*d))((x @ wq).reshape(B, Sq, Hq, Dh), 0, 2, 1, 3)
        k = (lambda x, n, axis: torch.repeat_interleave(x, n, dim=axis))(k_cache[:, :, Sk - W:, :], rep, axis=1)
        v = (lambda x, n, axis: torch.repeat_interleave(x, n, dim=axis))(v_cache[:, :, Sk - W:, :], rep, axis=1)
        scores = torch.einsum("bhqd,bhkd->bhqk", q, k) * (Dh ** -0.5)
        p = _softmax(scores, axis=-1)
        o = torch.einsum("bhqk,bhkd->bhqd", p, v)
        return (lambda x, *d: x.permute(*d))(o, 0, 2, 1, 3).reshape(B, Sq, Hq * Dh) @ wo

    x = A_x
    g = _sigmoid((x * gate_w).sum(-1, keepdims=True))
    a = _A_ref(x, A_k_cache, A_v_cache, A_wq, A_wo)
    b = _B_ref(x, B_k_cache, B_v_cache, B_wq, B_wo)
    return g * a + (1 - g) * b
```

```python
import sys
NAME = "gated_mix__sliding_block_cached__sliding_block_cached__decode"

L_WQ   = 0
L_PART = 0
L_FIN  = 16384
L_YP   = 28672
L_Q    = 45056
L_ML   = 46080
L_WO   = 47104
L_END  = 79872
W_EPOCH = 0
W_QX   = 0x10000
W_H1O  = 0x80000
W_H1ML = 0x100000
W_H2   = 0x180000
W_STAMP = 0x400000
W_SIZE = 0x800000

CSCALE = 0x3DB8AA3B
LOG2E  = 0x3FB8AA3B

class Gen:
    def __init__(self, stamps=False, round_s=True, spin_max=20000):
        self.L = []
        self.stamps = stamps
        self.round_s = round_s
        self.spin_max = spin_max
        self.nstamp = 0
    def A(self, s):
        self.L.append(s if s.endswith(":") else "    " + s)
    def stamp(self, idx):
        if self.stamps:
            self.A(f"s_memrealtime s[{76+2*idx}:{77+2*idx}]")
    def srd(self, d, lo, hi, nrec):
        A = self.A
        if lo != f"s{d}": A(f"s_mov_b32 s{d}, {lo}")
        if hi != f"s{d+1}": A(f"s_mov_b32 s{d+1}, {hi}")
        A(f"s_mov_b32 s{d+2}, {nrec}")
        A(f"s_mov_b32 s{d+3}, 0x20000")

    def spin_check(self, label, fail_label=None):
        A = self.A
        A("s_cmp_eq_u64 vcc, -1")
        A(f"s_cbranch_scc1 {label}_ok")
        A("s_sub_u32 s70, s70, 1")
        A("s_cmp_gt_i32 s70, 0")
        A(f"s_cbranch_scc1 {label}")
        A(f"{label}_ok:")

    def gen(self):
        A = self.A
        K = NAME + "_kernel"
        hdr = open("cdna_kernels/" + NAME + ".s.ref").read().split("\n")
        for line in hdr:
            if line.startswith("; @launch"): break
            self.L.append(line)
        self.L.append(f"; @launch grid=(256,1,1) block=(512,1,1) lds={L_END}")
        self.L.append('.amdgcn_target "amdgcn-amd-amdhsa--gfx950"')
        self.L.append(".text")
        self.L.append(f".globl {K}")
        self.L.append(".p2align 8")
        self.L.append(f".type {K},@function")
        self.L.append(f"{K}:")
        self.stamp(0)
        A("s_cmp_ge_u32 s2, 256")
        A("s_cbranch_scc1 L_end")
        A("s_lshr_b32 s57, s2, 7")
        A("s_mul_i32 s3, s57, 40")
        A("s_add_u32 s4, s0, s3")
        A("s_addc_u32 s5, s1, 0")
        A("s_load_dwordx8 s[8:15], s[4:5], 8")
        A("s_load_dwordx2 s[28:29], s[0:1], 104")
        A("s_load_dwordx2 s[36:37], s[0:1], 0")
        A("s_load_dwordx4 s[48:51], s[0:1], 80")
        A("v_lshrrev_b32 v6, 6, v0")
        A("v_and_b32 v1, 63, v0")
        A("v_readfirstlane_b32 s54, v6")
        A("v_and_b32 v2, 15, v1")
        A("v_lshrrev_b32 v3, 4, v1")
        A("s_and_b32 s55, s2, 7")
        A("s_bfe_u32 s56, s2, 0x40003")
        A("s_lshl_b32 s58, s57, 3")
        A("s_add_u32 s58, s58, s55")
        A("s_and_b32 s3, s56, 7")
        A("s_lshl_b32 s3, s3, 24")
        A("s_lshl_b32 s59, s55, 21")
        A("s_add_u32 s3, s3, s59")
        A("s_lshr_b32 s59, s56, 3")
        A("s_lshl_b32 s59, s59, 18")
        A("s_add_u32 s3, s3, s59")
        A("s_add_u32 s3, s3, 0x180000")
        for g in range(8):
            A(f"s_mov_b32 s{60+g}, {g*4096}")
        A(f"s_mov_b32 s70, {self.spin_max}")
        A("v_lshlrev_b32 v6, 15, v6")
        A("v_lshrrev_b32 v7, 2, v2")
        A("v_lshl_add_u32 v4, v7, 9, v6")
        A("v_and_b32 v7, 3, v2")
        A("v_lshl_add_u32 v4, v7, 6, v4")
        A("v_lshl_add_u32 v4, v3, 4, v4")
        A("v_lshl_add_u32 v5, v3, 9, v6")
        A("v_lshl_add_u32 v5, v2, 4, v5")
        A("s_cmp_eq_u32 s54, 0")
        A("s_waitcnt lgkmcnt(0)")
        self.stamp(1)
        A("s_cselect_b32 s71, 1, 0")
        A("s_add_u32 s20, s8, s3"); A("s_addc_u32 s21, s9, 0"); A("s_mov_b32 s22, 0x40000"); A("s_mov_b32 s23, 0x20000")
        A("s_add_u32 s24, s10, s3"); A("s_addc_u32 s25, s11, 0"); A("s_mov_b32 s26, 0x40000"); A("s_mov_b32 s27, 0x20000")
        A(f"s_mov_b32 s30, {W_SIZE}"); A("s_mov_b32 s31, 0x20000")
        A("s_cmp_eq_u32 s71, 0")
        A("s_cbranch_scc1 L_kloads")
        A("s_setprio 3")
        A("s_load_dwordx2 s[52:53], s[28:29], 0")
        A("s_lshl_b32 s3, s55, 10")
        A("s_lshl_b32 s59, s56, 6")
        A("s_add_u32 s3, s3, s59")
        A("s_add_u32 s32, s12, s3"); A("s_addc_u32 s33, s13, 0")
        A("s_sub_u32 s34, 3670016, s3"); A("s_mov_b32 s35, 0x20000")
        A("v_lshrrev_b32 v6, 2, v1")
        A("v_lshlrev_b32 v6, 13, v6")
        A("v_and_b32 v7, 3, v1")
        A("v_lshl_add_u32 v6, v7, 4, v6")
        A(f"s_mov_b32 m0, {L_WQ}")
        A("s_mov_b32 s3, 0")
        A("L_wq_loop:")
        A("buffer_load_dwordx4 v6, s[32:35], s3 offen nt lds")
        A("s_add_u32 s3, s3, 131072")
        A("s_add_u32 m0, m0, 1024")
        A(f"s_cmp_lt_u32 s3, {28*131072}")
        A("s_cbranch_scc1 L_wq_loop")
        A("s_mov_b32 s38, 7168"); A("s_mov_b32 s39, 0x20000")
        A("v_and_b32 v7, 7, v2")
        A("v_mul_u32_u24 v7, 896, v7")
        A("v_lshl_add_u32 v7, v3, 4, v7")
        for ks in range(14):
            A(f"buffer_load_dwordx4 v[{128+4*ks}:{131+4*ks}], v7, s[36:39], 0 offen offset:{ks*64}")
        for r in range(8, 12): A(f"v_mov_b32 v{r}, -1")
        A("s_lshl_b32 s72, s58, 4"); A("s_add_u32 s72, s72, s56")
        A("s_lshl_b32 s3, s72, 11"); A(f"s_add_u32 s3, s3, {W_H1O}")
        A("v_lshlrev_b32 v12, 4, v1")
        A("buffer_store_dwordx4 v[8:11], v12, s[28:31], s3 offen sc1")
        A("buffer_store_dwordx4 v[8:11], v12, s[28:31], s3 offen offset:1024 sc1")
        A("s_lshl_b32 s3, s72, 6"); A(f"s_add_u32 s3, s3, {W_H1ML}")
        A("s_mov_b64 exec, 1")
        A("buffer_store_dwordx4 v[8:11], v12, s[28:31], s3 offen sc1")
        A("s_mov_b64 exec, -1")
        A("s_and_b32 s3, s56, 7"); A("s_lshl_b32 s3, s3, 16")
        A("s_lshl_b32 s59, s58, 1"); A("s_lshr_b32 s73, s56, 3"); A("s_add_u32 s59, s59, s73")
        A("s_lshl_b32 s59, s59, 8"); A("s_add_u32 s73, s3, s59"); A(f"s_add_u32 s73, s73, {W_H2}")
        A("v_lshlrev_b32 v13, 13, v3"); A("v_lshl_add_u32 v13, v2, 4, v13")
        A("s_add_u32 s3, s73, 32768")
        A("buffer_store_dwordx4 v[8:11], v13, s[28:31], s73 offen sc1")
        A("buffer_store_dwordx4 v[8:11], v13, s[28:31], s3 offen sc1")
        A("v_lshrrev_b32 v14, 2, v2"); A("v_lshl_add_u32 v14, v3, 3, v14"); A("v_lshlrev_b32 v14, 6, v14")
        A("v_and_b32 v15, 3, v2"); A("v_lshl_add_u32 v14, v15, 3, v14")
        A("s_waitcnt vmcnt(0) lgkmcnt(0)")
        A("s_add_u32 s52, s52, 0x7f4a7c15"); A("s_addc_u32 s53, s53, 0x9e3779b9")
        def trbatch(b):
            base = 184 + 16 * (b & 1)
            for kk in range(2):
                ks = 2 * b + kk
                for t in range(2):
                    for hf in range(2):
                        r = base + kk * 8 + t * 4 + hf * 2
                        A(f"ds_read_b64_tr_b16 v[{r}:{r+1}], v14 offset:{L_WQ + ks*2048 + t*32 + hf*256}")
        trbatch(0)
        for b in range(7):
            if b < 6:
                trbatch(b + 1); A("s_waitcnt lgkmcnt(8)")
            else:
                A("s_waitcnt lgkmcnt(0)")
            base = 184 + 16 * (b & 1)
            for kk in range(2):
                ks = 2 * b + kk
                for t in range(2):
                    r = base + kk * 8 + t * 4
                    c = "0" if ks == 0 else f"v[{48+4*t}:{51+4*t}]"
                    A(f"v_mfma_f32_16x16x32_bf16 v[{48+4*t}:{51+4*t}], v[{r}:{r+3}], v[{128+4*ks}:{131+4*ks}], {c}")
        A("v_and_b32 v6, 7, v2"); A("v_lshlrev_b32 v6, 11, v6")
        A("v_lshrrev_b32 v7, 3, v2"); A("v_lshl_add_u32 v6, v7, 6, v6"); A("v_lshl_add_u32 v6, v3, 4, v6")
        A("v_cmp_lt_u32 vcc, 7, v2")
        A("s_lshl_b32 s74, s58, 14"); A(f"s_add_u32 s74, s74, {W_QX}")
        A("s_lshl_b32 s3, s56, 7"); A("s_add_u32 s3, s3, s74")
        A("v_mov_b32 v10, s52"); A("v_mov_b32 v11, s53")
        A("s_nop 2")
        A("v_cvt_pk_bf16_f32 v8, v48, v49"); A("v_cvt_pk_bf16_f32 v9, v50, v51")
        A("v_cvt_pk_bf16_f32 v56, v52, v53"); A("v_cvt_pk_bf16_f32 v57, v54, v55")
        A("v_cndmask_b32 v8, v8, v56, vcc"); A("v_cndmask_b32 v9, v9, v57, vcc")
        A("buffer_store_dwordx4 v[8:11], v6, s[28:31], s3 offen sc1")
        self.stamp(2)
        A("L_kloads:")
        for t in range(16):
            for c in range(2):
                r = 128 + 8 * t + 4 * c
                A(f"buffer_load_dwordx4 v[{r}:{r+3}], v4, s[20:23], s{60+t//2} offen offset:{(t&1)*2048+c*256} nt")
        A("v_and_b32 v6, 1, v2")
        A("v_cmp_eq_u32 vcc, 1, v6")
        A("v_mov_b32 v7, 0x0c0c0100"); A("v_mov_b32 v8, 0x01000c0c")
        A("v_mov_b32 v9, 0x0c0c0302"); A("v_mov_b32 v10, 0x03020c0c")
        A("v_cndmask_b32 v7, v7, v8, vcc"); A("v_cndmask_b32 v9, v9, v10, vcc")
        A("v_bfe_u32 v6, v2, 1, 2")
        A("v_mov_b32 v8, 0x0c0c0c0c")
        for x in range(4):
            A(f"v_cmp_eq_u32 vcc, {x}, v6")
            A("s_nop 1")
            A(f"v_cndmask_b32 v{32+2*x}, v8, v7, vcc")
            A(f"v_cndmask_b32 v{33+2*x}, v8, v9, vcc")
        A("s_cmp_eq_u32 s71, 0")
        A("s_cbranch_scc1 L_qbar")
        A("v_lshlrev_b32 v12, 4, v1")
        A("s_and_b32 s3, s56, 7"); A("s_lshl_b32 s3, s3, 11"); A("s_add_u32 s3, s3, s74")
        A("L_qpoll:")
        A("buffer_load_dwordx4 v[48:51], v12, s[28:31], s3 offen sc1")
        A("buffer_load_dwordx4 v[52:55], v12, s[28:31], s3 offen offset:1024 sc1")
        A("s_waitcnt vmcnt(0)")
        A("v_cmp_eq_u64 vcc, s[52:53], v[50:51]")
        A("v_cmp_eq_u64 s[68:69], s[52:53], v[54:55]")
        A("s_nop 1")
        A("s_and_b64 vcc, vcc, s[68:69]")
        self.spin_check("L_qpoll")
        A("v_lshlrev_b32 v12, 3, v1")
        A(f"ds_write_b64 v12, v[48:49] offset:{L_Q}")
        A(f"ds_write_b64 v12, v[52:53] offset:{L_Q+512}")
        A("s_setprio 0")
        A("s_waitcnt lgkmcnt(0)")
        A("L_qbar:")
        self.stamp(3)
        A("s_barrier")
        A("v_lshrrev_b32 v6, 3, v2"); A("v_lshlrev_b32 v6, 9, v6")
        A("v_and_b32 v7, 3, v2"); A("v_lshl_add_u32 v6, v7, 6, v6"); A("v_lshl_add_u32 v6, v3, 4, v6")
        A(f"ds_read_b128 v[16:19], v6 offset:{L_Q}")
        A(f"ds_read_b128 v[20:23], v6 offset:{L_Q+256}")
        A("s_waitcnt lgkmcnt(0)")
        for t in range(16):
            r = 128 + 8 * t; d = 64 + 4 * t
            A("s_waitcnt vmcnt(30)")
            A(f"v_mfma_f32_16x16x32_bf16 v[{d}:{d+3}], v[{r}:{r+3}], v[16:19], 0")
            A(f"v_mfma_f32_16x16x32_bf16 v[{d}:{d+3}], v[{r+4}:{r+7}], v[20:23], v[{d}:{d+3}]")
            for c in range(2):
                A(f"buffer_load_dwordx4 v[{r+4*c}:{r+4*c+3}], v5, s[24:27], s{60+t//2} offen offset:{(t&1)*2048+c*256} nt")
        A("s_lshl_b32 s3, s55, 1"); A("s_lshr_b32 s59, s56, 3"); A("s_add_u32 s3, s3, s59")
        A("s_mul_i32 s3, s3, 229376")
        A("s_and_b32 s59, s56, 7"); A("s_mul_i32 s59, s59, 112"); A("s_add_u32 s3, s3, s59")
        A("s_add_u32 s32, s14, s3"); A("s_addc_u32 s33, s15, 0")
        A("s_sub_u32 s34, 3670016, s3"); A("s_mov_b32 s35, 0x20000")
        A("v_lshrrev_b32 v6, 3, v1"); A("v_mul_u32_u24 v6, 896, v6")
        A("v_and_b32 v7, 7, v1"); A("v_lshl_add_u32 v6, v7, 4, v6")
        A("s_mul_i32 s3, s54, 28672")
        A("s_lshl_b32 s59, s54, 12"); A(f"s_add_u32 m0, s59, {L_WO}"); A("s_nop 0")
        for u in range(4):
            A("buffer_load_dwordx4 v6, s[32:35], s3 offen nt lds")
            if u < 3:
                A("s_add_u32 s3, s3, 7168"); A("s_add_u32 m0, m0, 1024"); A("s_nop 0")
        self.stamp(4)
        S = lambda t: 64 + 4 * t
        for t in range(16): A(f"v_mov_b32_dpp v{S(t)}, v{S(t)} quad_perm:[0,0,0,0] row_mask:0xf bank_mask:0xf")
        for x in range(1, 4):
            for t in range(16):
                A(f"v_add_f32_dpp v{S(t)}, v{S(t)+x}, v{S(t)} quad_perm:[{x},{x},{x},{x}] row_mask:0xf bank_mask:0xf")
        if self.round_s:
            for u in range(8): A(f"v_cvt_pk_bf16_f32 v{40+u}, v{S(2*u)}, v{S(2*u+1)}")
            for u in range(8):
                A(f"v_lshlrev_b32 v{S(2*u)}, 16, v{40+u}")
                A(f"v_and_b32 v{S(2*u+1)}, 0xffff0000, v{40+u}")
        A(f"v_max3_f32 v6, v{S(0)}, v{S(1)}, v{S(2)}")
        A(f"v_max3_f32 v7, v{S(3)}, v{S(4)}, v{S(5)}")
        A(f"v_max3_f32 v8, v{S(6)}, v{S(7)}, v{S(8)}")
        A(f"v_max3_f32 v9, v{S(9)}, v{S(10)}, v{S(11)}")
        A(f"v_max3_f32 v10, v{S(12)}, v{S(13)}, v{S(14)}")
        A(f"v_max3_f32 v6, v6, v7, v{S(15)}")
        A("v_max3_f32 v8, v8, v9, v10")
        A("v_max_f32 v6, v6, v8")
        def xrow(reg, tmp, op):
            A(f"v_mov_b32 v{tmp}, v{reg}"); A("s_nop 1")
            A(f"v_permlane16_swap_b32 v{reg}, v{tmp}")
            A(f"{op} v{reg}, v{reg}, v{tmp}")
            A(f"v_mov_b32 v{tmp}, v{reg}"); A("s_nop 1")
            A(f"v_permlane32_swap_b32 v{reg}, v{tmp}")
            A(f"{op} v{reg}, v{reg}, v{tmp}")
        xrow(6, 7, "v_max_f32")
        A(f"s_mov_b32 s3, {CSCALE}")
        A("v_mul_f32 v6, s3, v6")
        for t in range(16): A(f"v_fma_f32 v{S(t)}, v{S(t)}, s3, -v6")
        for t in range(16): A(f"v_exp_f32 v{S(t)}, v{S(t)}")
        A("s_nop 0")
        for u in range(8): A(f"v_cvt_pk_bf16_f32 v{40+u}, v{S(2*u)}, v{S(2*u+1)}")
        for u in range(8): A(f"v_add_f32 v{S(2*u)}, v{S(2*u)}, v{S(2*u+1)}")
        for u in range(4): A(f"v_add_f32 v{S(4*u)}, v{S(4*u)}, v{S(4*u+2)}")
        A(f"v_add_f32 v{S(0)}, v{S(0)}, v{S(4)}"); A(f"v_add_f32 v{S(8)}, v{S(8)}, v{S(12)}")
        A(f"v_add_f32 v7, v{S(0)}, v{S(8)}")
        xrow(7, 8, "v_add_f32")
        A("v_lshrrev_b32 v8, 3, v2"); A("v_lshlrev_b32 v8, 6, v8")
        A("s_lshl_b32 s3, s54, 2"); A("v_add_u32 v8, s3, v8")
        A("s_mov_b64 exec, 0x101")
        A(f"ds_write_b32 v8, v6 offset:{L_ML}")
        A(f"ds_write_b32 v8, v7 offset:{L_ML+32}")
        A("s_mov_b64 exec, -1")
        for t in range(16):
            for x in range(4):
                A(f"v_perm_b32 v{64+4*t+x}, v{40+t//2}, v{40+t//2}, v{32+2*x+(t&1)}")
        A("v_lshrrev_b32 v8, 1, v3"); A("v_lshlrev_b32 v8, 10, v8")
        A("v_lshl_add_u32 v8, v2, 5, v8")
        A("v_and_b32 v9, 1, v3"); A("v_lshl_add_u32 v8, v9, 4, v8")
        A("s_lshl_b32 s3, s54, 11"); A("v_add_u32 v8, s3, v8")
        for t in range(16):
            r = 128 + 8 * t; f = 64 + 4 * t
            A(f"s_waitcnt vmcnt({30 - 2*t + 4})")
            for c in range(2):
                acc = f"v[{24+4*c}:{27+4*c}]"
                A(f"v_mfma_f32_16x16x32_bf16 {acc}, v[{f}:{f+3}], v[{r+4*c}:{r+4*c+3}], {'0' if t == 0 else acc}")
        self.stamp(5)
        A("s_nop 7")
        A(f"ds_write_b128 v8, v[24:27] offset:{L_PART}")
        A(f"ds_write_b128 v8, v[28:31] offset:{L_PART+512}")
        A("v_lshlrev_b32 v10, 11, v2"); A("v_lshl_add_u32 v10, v3, 5, v10")
        A("v_lshlrev_b32 v11, 6, v2")
        A("s_lshr_b32 s59, s56, 3")
        A("s_lshl_b32 s3, s58, 15"); A("s_lshl_b32 s68, s59, 10"); A("s_add_u32 s3, s3, s68")
        A("s_lshl_b32 s68, s54, 7"); A("s_add_u32 s3, s3, s68"); A(f"s_add_u32 s68, s3, {W_H1O}")
        A("s_lshl_b32 s3, s58, 10"); A("s_lshl_b32 s59, s59, 3"); A("s_add_u32 s3, s3, s59"); A(f"s_add_u32 s69, s3, {W_H1ML}")
        A("v_lshrrev_b32 v14, 2, v2"); A("v_lshl_add_u32 v14, v3, 3, v14"); A("v_lshlrev_b32 v14, 7, v14")
        A("v_and_b32 v15, 3, v2"); A("v_lshl_add_u32 v14, v15, 3, v14")
        A("s_lshl_b32 s3, s54, 12"); A("v_add_u32 v14, s3, v14")
        A("s_cmp_lg_u32 s71, 1"); A("s_cbranch_scc1 L_barA")
        A("s_cmp_ge_u32 s2, 64"); A("s_cbranch_scc1 L_barA")
        A("v_bfe_u32 v12, v1, 1, 4"); A("v_lshlrev_b32 v12, 14, v12")
        A("v_and_b32 v13, 1, v1"); A("v_lshl_add_u32 v12, v13, 10, v12")
        A("s_lshl_b32 s3, s55, 7"); A(f"s_add_u32 s3, s3, {W_QX}")
        A("s_lshr_b32 s59, s2, 3"); A("s_mul_i32 s59, s59, 896")
        A("s_add_u32 s36, s36, s59"); A("s_addc_u32 s37, s37, 0"); A("s_mov_b32 s38, 896"); A("s_mov_b32 s39, 0x20000")
        A("s_mov_b32 s40, s48"); A("s_mov_b32 s41, s49"); A("s_mov_b32 s42, 896"); A("s_mov_b32 s43, 0x20000")
        A("v_lshlrev_b32 v13, 4, v1")
        A("buffer_load_dwordx4 v[128:131], v13, s[36:39], 0 offen")
        A("buffer_load_dwordx4 v[132:135], v13, s[40:43], 0 offen")
        A("L_tok:")
        A("buffer_load_dwordx4 v[48:51], v12, s[28:31], s3 offen sc1")
        A("s_waitcnt vmcnt(0)")
        A("v_cmp_eq_u64 vcc, s[52:53], v[50:51]")
        A("s_nop 1")
        self.spin_check("L_tok")
        for k in range(4):
            A(f"v_lshlrev_b32 v{136+2*k}, 16, v{128+k}"); A(f"v_and_b32 v{137+2*k}, 0xffff0000, v{128+k}")
            A(f"v_lshlrev_b32 v{144+2*k}, 16, v{132+k}"); A(f"v_and_b32 v{145+2*k}, 0xffff0000, v{132+k}")
        for k in range(8): A(f"v_mul_f32 v{136+k}, v{136+k}, v{144+k}")
        for k in range(4): A(f"v_cvt_pk_bf16_f32 v{128+k}, v{136+2*k}, v{137+2*k}")
        for k in range(4):
            A(f"v_lshlrev_b32 v{136+2*k}, 16, v{128+k}"); A(f"v_and_b32 v{137+2*k}, 0xffff0000, v{128+k}")
        for k in range(4): A(f"v_add_f32 v{136+k}, v{136+k}, v{140+k}")
        A("v_add_f32 v136, v136, v138"); A("v_add_f32 v137, v137, v139"); A("v_add_f32 v62, v136, v137")
        for sh in (8, 4, 2, 1):
            A("s_nop 1")
            A(f"v_add_f32_dpp v62, v62, v62 row_ror:{sh} row_mask:0xf bank_mask:0xf")
        xrow(62, 63, "v_add_f32")
        A("v_cvt_pk_bf16_f32 v62, v62, v62"); A("v_lshlrev_b32 v62, 16, v62")
        A(f"v_mul_f32 v62, {hex(LOG2E | 0x80000000)}, v62")
        A("v_exp_f32 v62, v62"); A("s_nop 0")
        A("v_add_f32 v62, 1.0, v62")
        A("v_rcp_f32 v62, v62"); A("s_nop 0")
        A("v_cvt_pk_bf16_f32 v62, v62, v62"); A("v_lshlrev_b32 v62, 16, v62")
        A("v_sub_f32 v63, 1.0, v62")
        A("v_cvt_pk_bf16_f32 v63, v63, v63"); A("v_lshlrev_b32 v63, 16, v63")
        A("L_barA:")
        A("s_waitcnt lgkmcnt(0)")
        A("s_barrier")
        self.stamp(6)
        if self.stamps: A("s_waitcnt lgkmcnt(0)")
        A("s_cmp_ge_u32 s54, 2"); A("s_cbranch_scc1 L_gather")
        A("v_lshlrev_b32 v12, 4, v1"); A("s_lshl_b32 s3, s54, 10"); A("v_add_u32 v13, s3, v12")
        A("s_lshl_b32 s59, s54, 6"); A("v_mov_b32 v9, s59")
        A(f"ds_read_b128 v[64:67], v9 offset:{L_ML}"); A(f"ds_read_b128 v[68:71], v9 offset:{L_ML+16}")
        A(f"ds_read_b128 v[72:75], v9 offset:{L_ML+32}"); A(f"ds_read_b128 v[76:79], v9 offset:{L_ML+48}")
        for w in range(8):
            A(f"ds_read_b128 v[{80+4*w}:{83+4*w}], v13 offset:{L_PART + w*2048}")
        A("s_waitcnt lgkmcnt(8)")
        A("v_max3_f32 v6, v64, v65, v66"); A("v_max3_f32 v7, v67, v68, v69"); A("v_max3_f32 v6, v6, v70, v71"); A("v_max_f32 v6, v6, v7")
        for w in range(8): A(f"v_sub_f32 v{64+w}, v{64+w}, v6")
        for w in range(8): A(f"v_exp_f32 v{64+w}, v{64+w}")
        A("s_nop 0")
        A("v_mul_f32 v7, v64, v72")
        for w in range(1, 8): A(f"v_fmac_f32 v7, v{64+w}, v{72+w}")
        A("s_waitcnt lgkmcnt(0)")
        for k in range(4): A(f"v_mul_f32 v{112+k}, v64, v{80+k}")
        for w in range(1, 8):
            for k in range(4): A(f"v_fmac_f32 v{112+k}, v{64+w}, v{80+4*w+k}")
        for k in range(4): A(f"v_min_u32 v{112+k}, -2, v{112+k}")
        A("v_min_u32 v6, -2, v6"); A("v_min_u32 v7, -2, v7")
        A("s_lshl_b32 s72, s58, 4"); A("s_add_u32 s72, s72, s56")
        A("s_lshl_b32 s59, s72, 11"); A(f"s_add_u32 s59, s59, {W_H1O}")
        A("buffer_store_dwordx4 v[112:115], v13, s[28:31], s59 offen sc1")
        A("s_lshl_b32 s59, s72, 6"); A("s_lshl_b32 s3, s54, 3"); A("s_add_u32 s59, s59, s3"); A(f"s_add_u32 s59, s59, {W_H1ML}")
        A("s_mov_b64 exec, 1")
        A("buffer_store_dwordx2 v[6:7], v12, s[28:31], s59 offen sc1")
        A("s_mov_b64 exec, -1")
        A("L_gather:")
        A("L_h1poll:")
        A("buffer_load_dwordx2 v[72:73], v11, s[28:31], s69 offen sc1")
        A("buffer_load_dwordx4 v[64:67], v10, s[28:31], s68 offen sc1")
        A("buffer_load_dwordx4 v[68:71], v10, s[28:31], s68 offen offset:16 sc1")
        A("s_waitcnt vmcnt(0)")
        A("v_max3_u32 v6, v64, v65, v66"); A("v_max3_u32 v7, v67, v68, v69"); A("v_max3_u32 v9, v70, v71, v72")
        A("v_max3_u32 v6, v6, v7, v73"); A("v_max_u32 v6, v6, v9")
        A("v_cmp_ne_u32 vcc, -1, v6")
        A("s_nop 1")
        self.spin_check("L_h1poll")
        self.stamp(7)
        if self.stamps: A("s_waitcnt lgkmcnt(0)")
        for t in range(4):
            for hf in range(2):
                r = 80 + 4 * t + 2 * hf
                A(f"ds_read_b64_tr_b16 v[{r}:{r+1}], v14 offset:{L_WO + t*32 + hf*512}")
        A("v_mov_b32_dpp v74, v72 row_ror:8 row_mask:0xf bank_mask:0xf")
        A("v_mov_b32_dpp v75, v73 row_ror:8 row_mask:0xf bank_mask:0xf")
        A("v_max_f32 v76, v72, v74")
        A("v_sub_f32 v72, v72, v76"); A("v_sub_f32 v74, v74, v76")
        A("v_exp_f32 v72, v72"); A("v_exp_f32 v74, v74"); A("s_nop 0")
        A("v_mul_f32 v73, v73, v72"); A("v_fmac_f32 v73, v75, v74")
        A("v_rcp_f32 v73, v73"); A("s_nop 0")
        A("v_mul_f32 v72, v72, v73")
        for k in range(8): A(f"v_mul_f32 v{64+k}, v{64+k}, v72")
        for k in range(8): A(f"v_add_f32_dpp v{64+k}, v{64+k}, v{64+k} row_ror:8 row_mask:0xf bank_mask:0xf")
        for k in range(4): A(f"v_cvt_pk_bf16_f32 v{76+k}, v{64+2*k}, v{65+2*k}")
        A("v_lshlrev_b32 v9, 8, v2"); A("v_lshl_add_u32 v9, v3, 4, v9")
        A("s_lshl_b32 s3, s54, 11"); A("v_add_u32 v9, s3, v9")
        A("s_waitcnt lgkmcnt(0)")
        for t in range(4):
            A(f"v_mfma_f32_16x16x32_bf16 v[{96+4*t}:{99+4*t}], v[{80+4*t}:{83+4*t}], v[76:79], 0")
        A("s_mov_b32 exec_lo, 0x00ff00ff"); A("s_mov_b32 exec_hi, 0x00ff00ff")
        A("s_nop 2")
        for t in range(4):
            if t == 0: A("s_nop 0")
            A(f"ds_write_b128 v9, v[{96+4*t}:{99+4*t}] offset:{L_YP + t*64}")
        A("s_mov_b64 exec, -1")
        A("s_waitcnt lgkmcnt(0)")
        A("s_barrier")
        A("s_cmp_ge_u32 s54, 2"); A("s_cbranch_scc1 L_final")
        A("v_lshlrev_b32 v12, 4, v0")
        for w in range(8):
            A(f"ds_read_b128 v[{64+4*w}:{67+4*w}], v12 offset:{L_YP + w*2048}")
        A("s_and_b32 s3, s56, 7"); A("s_lshl_b32 s3, s3, 16")
        A("s_lshl_b32 s59, s58, 1"); A("s_lshr_b32 s73, s56, 3"); A("s_add_u32 s59, s59, s73")
        A("s_lshl_b32 s59, s59, 8"); A("s_add_u32 s73, s3, s59"); A(f"s_add_u32 s73, s73, {W_H2}")
        A("s_lshl_b32 s3, s54, 15"); A("s_add_u32 s73, s73, s3")
        A("v_lshlrev_b32 v13, 13, v3"); A("v_lshl_add_u32 v13, v2, 4, v13")
        for st in range(3):
            A(f"s_waitcnt lgkmcnt({[6,4,0][st]})") if st > 0 or True else None
            if st == 0:
                for k in range(4): A(f"v_add_f32 v{64+k}, v{64+k}, v{68+k}")
            elif st == 1:
                for k in range(4): A(f"v_add_f32 v{72+k}, v{72+k}, v{76+k}")
                for k in range(4): A(f"v_add_f32 v{64+k}, v{64+k}, v{72+k}")
            else:
                for k in range(4): A(f"v_add_f32 v{80+k}, v{80+k}, v{84+k}")
                for k in range(4): A(f"v_add_f32 v{88+k}, v{88+k}, v{92+k}")
                for k in range(4): A(f"v_add_f32 v{64+k}, v{64+k}, v{80+k}")
                for k in range(4): A(f"v_add_f32 v{64+k}, v{64+k}, v{88+k}")
        for k in range(4): A(f"v_min_u32 v{64+k}, -2, v{64+k}")
        A("buffer_store_dwordx4 v[64:67], v13, s[28:31], s73 offen sc1")
        A("L_final:")
        self.stamp(8)
        A("s_cmp_ge_u32 s2, 64"); A("s_cbranch_scc1 L_done")
        A("s_lshl_b32 s3, s55, 16"); A("s_lshr_b32 s59, s2, 3"); A("s_lshl_b32 s59, s59, 13"); A("s_add_u32 s3, s3, s59")
        A("s_lshl_b32 s59, s54, 10"); A("s_add_u32 s3, s3, s59"); A(f"s_add_u32 s3, s3, {W_H2}")
        A("v_lshlrev_b32 v12, 4, v1")
        A("v_lshlrev_b32 v13, 4, v0")
        A("L_h2poll:")
        A("buffer_load_dwordx4 v[68:71], v12, s[28:31], s3 offen sc1")
        A("s_waitcnt vmcnt(0)")
        A("v_max3_u32 v6, v68, v69, v70"); A("v_max_u32 v6, v6, v71")
        A("v_cmp_ne_u32 vcc, -1, v6")
        A("s_nop 1")
        self.spin_check("L_h2poll")
        self.stamp(9)
        A(f"ds_write_b128 v13, v[68:71] offset:{L_FIN}")
        A("s_waitcnt lgkmcnt(0)")
        A("s_barrier")
        A("s_cmp_lg_u32 s54, 0"); A("s_cbranch_scc1 L_done")
        A("v_lshlrev_b32 v12, 11, v3"); A("v_lshl_add_u32 v12, v2, 4, v12")
        for k in range(8):
            A(f"ds_read_b128 v[{64+4*k}:{67+4*k}], v12 offset:{L_FIN + k*256}")
        A("s_mov_b32 s44, s50"); A("s_mov_b32 s45, s51"); A("s_mov_b32 s46, 7168"); A("s_mov_b32 s47, 0x20000")
        A("s_lshr_b32 s59, s2, 3"); A("s_mul_i32 s59, s59, 896"); A("s_mul_i32 s3, s55, 112"); A("s_add_u32 s3, s3, s59")
        A("v_lshlrev_b32 v13, 3, v1")
        A("s_waitcnt lgkmcnt(6)")
        for k in range(4): A(f"v_add_f32 v{64+k}, v{64+k}, v{68+k}")
        A("s_waitcnt lgkmcnt(4)")
        for k in range(4): A(f"v_add_f32 v{72+k}, v{72+k}, v{76+k}")
        for k in range(4): A(f"v_add_f32 v{64+k}, v{64+k}, v{72+k}")
        A("s_waitcnt lgkmcnt(0)")
        for k in range(4): A(f"v_add_f32 v{80+k}, v{80+k}, v{84+k}")
        for k in range(4): A(f"v_add_f32 v{88+k}, v{88+k}, v{92+k}")
        for k in range(4): A(f"v_add_f32 v{64+k}, v{64+k}, v{80+k}")
        for k in range(4): A(f"v_add_f32 v{64+k}, v{64+k}, v{88+k}")
        for k in range(4): A(f"v_mov_b32 v{68+k}, v{64+k}")
        A("s_nop 1")
        for k in range(4): A(f"v_permlane16_swap_b32 v{64+k}, v{68+k}")
        for k in range(4): A(f"v_add_f32 v{64+k}, v{64+k}, v{68+k}")
        A("v_cvt_pk_bf16_f32 v64, v64, v65"); A("v_cvt_pk_bf16_f32 v65, v66, v67")
        A("v_mov_b32 v66, v64"); A("v_mov_b32 v67, v65"); A("s_nop 1")
        A("v_permlane32_swap_b32 v64, v66"); A("v_permlane32_swap_b32 v65, v67")
        A("v_lshlrev_b32 v68, 16, v64"); A("v_and_b32 v69, 0xffff0000, v64"); A("v_lshlrev_b32 v70, 16, v65"); A("v_and_b32 v71, 0xffff0000, v65")
        A("v_lshlrev_b32 v72, 16, v66"); A("v_and_b32 v73, 0xffff0000, v66"); A("v_lshlrev_b32 v74, 16, v67"); A("v_and_b32 v75, 0xffff0000, v67")
        for k in range(4): A(f"v_mul_f32 v{68+k}, v62, v{68+k}")
        for k in range(4): A(f"v_mul_f32 v{72+k}, v63, v{72+k}")
        for k in range(4): A(f"v_cvt_pk_bf16_f32 v{64+k}, v{68+2*k}, v{69+2*k}")
        A("v_lshlrev_b32 v68, 16, v64"); A("v_and_b32 v69, 0xffff0000, v64"); A("v_lshlrev_b32 v70, 16, v65"); A("v_and_b32 v71, 0xffff0000, v65")
        A("v_lshlrev_b32 v72, 16, v66"); A("v_and_b32 v73, 0xffff0000, v66"); A("v_lshlrev_b32 v74, 16, v67"); A("v_and_b32 v75, 0xffff0000, v67")
        for k in range(4): A(f"v_add_f32 v{68+k}, v{68+k}, v{72+k}")
        A("v_cvt_pk_bf16_f32 v64, v68, v69"); A("v_cvt_pk_bf16_f32 v65, v70, v71")
        A("s_mov_b64 exec, 0x3fff")
        A("buffer_store_dwordx2 v[64:65], v13, s[44:47], s3 offen")
        A("s_cmp_lg_u32 s2, 0"); A("s_cbranch_scc1 L_done")
        A("s_mov_b64 exec, 1")
        A("v_mov_b32 v66, s52"); A("v_mov_b32 v67, s53")
        A("buffer_store_dwordx2 v[66:67], v13, s[28:31], 0 offen sc1")
        A("L_done:")
        if self.stamps:
            self.stamp(10)
            A("s_mov_b64 exec, -1")
            A("s_getreg_b32 s98, hwreg(HW_REG_XCC_ID)")
            A("s_mov_b32 s99, s70")
            A("s_lshl_b32 s3, s2, 3"); A("s_add_u32 s3, s3, s54"); A("s_lshl_b32 s3, s3, 7"); A(f"s_add_u32 s3, s3, {W_STAMP}")
            A("v_mov_b32 v1, 0")
            A("s_waitcnt lgkmcnt(0)")
            for q in range(6):
                for k in range(4): A(f"v_mov_b32 v{8+k}, s{76+4*q+k}")
                A(f"buffer_store_dwordx4 v[8:11], v1, s[28:31], s3 offen offset:{16*q}")
                A("s_nop 1")
        A("L_end:")
        A("s_endpgm")
        self.L += ['.section .rodata,"a"', ".p2align 6", f".amdhsa_kernel {K}",
                   "  .amdhsa_next_free_vgpr 256", "  .amdhsa_next_free_sgpr 102", "  .amdhsa_accum_offset 256",
                   "  .amdhsa_group_segment_fixed_size 0", "  .amdhsa_kernarg_size 112", "  .amdhsa_user_sgpr_count 2",
                   "  .amdhsa_user_sgpr_kernarg_segment_ptr 1", "  .amdhsa_system_sgpr_workgroup_id_x 1",
                   "  .amdhsa_float_denorm_mode_32 3",
                   ".end_amdhsa_kernel"]
        return "\n".join(l for l in self.L if l is not None) + "\n"

if __name__ == "__main__":
    open("v1.s", "w").write(Gen().gen())
    open("v1_st.s", "w").write(Gen(stamps=True).gen())
    open("v1_nors.s", "w").write(Gen(round_s=False).gen())
```

```python
import sys
NAME = "gated_mix__sliding_block_cached__sliding_block_cached__decode"

L_WQ   = 0
L_PART = 0
L_FIN  = 16384
L_QP   = 28672
L_YP   = 28672
YROW   = 272
YWAVE  = 16 * YROW
L_Q    = 63488
L_ML   = 64512
L_FLG  = 64640
L_MODE = 64656
L_WO   = 65536
L_END  = 98304
W_QX   = 0x10000
W_XT   = 0x50000
W_PR   = 0x52000
W_H1O  = 0x80000
W_H1ML = 0x100000
W_H2   = 0x110000
W_EPOCH = 0x1F0000
W_STAMP = 0x400000
W_SIZE = 0x800000

CSCALE = 0x3DB8AA3B
LOG2E  = 0x3FB8AA3B
DPPM = "row_mask:0xf bank_mask:0xf"
TAG = "s[52:53]"

class Gen:
    def __init__(self, **kw):
        self.o = dict(stamps=False, spin_max=200000, qsleep=4, h1sleep=1, h2sleep0=16, h2sleep=3, pollat=8,
                      xlds=True, opmode=1, late=False, rotv=0, rc=(2,3,1,4,2), ilv=None, nohelp=False, cap=None, capv=None, chkat=None, capfrom=0, slowev=True, freeto=0, capodd=None, h2pipe=8, hyb=False, fastpro=True, ad=None, earlysetup=True, qkilv=True, stepsrc=None, pause=1, vpre=8, vrev=False, skiptail=False)
        for k in kw: assert k in self.o, k
        self.o.update(kw)
        self.L = []
        self.snames = []
        self.__dict__['outl'] = []
        self.__dict__['uid'] = 0
    def __getattr__(self, k):
        return self.__dict__["o"][k]
    def A(self, *ss):
        for s in ss:
            self.L.append(s if s.endswith(":") else "    " + s)
    def C(self, text):
        for t in text.strip("\n").split("\n"): self.L.append("    ; " + t.strip())
    def stamp(self, name):
        if self.stamps:
            idx = len(self.snames); self.snames.append(name)
            self.A("s_memrealtime s[76:77]", "s_waitcnt lgkmcnt(0)", f"v_writelane_b32 v61, s76, {idx}")
    def note(self, name, sreg):
        if self.stamps:
            idx = len(self.snames); self.snames.append("#" + name)
            self.A(f"v_writelane_b32 v61, {sreg}, {idx}")
    def spin_check(self, label, sleep):
        A = self.A
        A("s_cmp_eq_u64 vcc, -1", f"s_cbranch_scc1 {label}_ok")
        if sleep: A(f"s_sleep {sleep}")
        A("s_sub_u32 s70, s70, 1", "s_cmp_gt_i32 s70, 0", f"s_cbranch_scc1 {label}", f"{label}_ok:")
    def spin_masked(self, label, sleep):
        A = self.A
        A("s_andn2_b64 exec, exec, vcc", f"s_cbranch_execz {label}_ok")
        if sleep: A(f"s_sleep {sleep}")
        A("s_sub_u32 s70, s70, 1", "s_cmp_gt_i32 s70, 0", f"s_cbranch_scc1 {label}", f"{label}_ok:", "s_mov_b64 exec, -1")
    def xrow(self, reg, tmp, op):
        A = self.A
        A(f"v_mov_b32 v{tmp}, v{reg}", "s_nop 1", f"v_permlane16_swap_b32 v{reg}, v{tmp}", f"{op} v{reg}, v{reg}, v{tmp}")
        A(f"v_mov_b32 v{tmp}, v{reg}", "s_nop 1", f"v_permlane32_swap_b32 v{reg}, v{tmp}", f"{op} v{reg}, v{reg}, v{tmp}")
    def vreg(self, t, c):
        return 64 + 8 * t + 4 * c if t < 8 else 132 + 8 * (2 * (t - 8) + c)
    def toff(self, t):
        return f"s{60+t}" if t < 8 else f"s{40+t-8}"
    def kload(self, t):
        for c in range(2):
            r = 128 + 8 * t + 4 * c
            if self.ilv is not None:
                self.A(f"buffer_load_dwordx4 v[{r}:{r+3}], v4, s[20:23], {self.toff(t)} offen offset:{c*256} nt"); continue
            if self.rotv in (3, 4): self.A(f"buffer_load_dwordx4 v[{r}:{r+3}], v{30 if t & 1 else 4}, s[20:23], s{60+t//2} offen offset:{c*256} nt")
            else: self.A(f"buffer_load_dwordx4 v[{r}:{r+3}], v4, s[20:23], s{60+t//2} offen offset:{(t&1)*2048+c*256} nt")
        if self.pause and (t + 1) % self.pause == 0: self.pz(None if t < self.capfrom else self.cap, t)
    def vload(self, t):
        for c in range(2):
            r = self.vreg(t, c)
            if self.ilv is not None:
                self.A(f"buffer_load_dwordx4 v[{r}:{r+3}], v5, s[24:27], {self.toff(t)} offen offset:{c*256} nt"); continue
            if self.rotv in (3, 4): self.A(f"buffer_load_dwordx4 v[{r}:{r+3}], v{31 if t & 1 else 5}, s[24:27], s{60+t//2} offen offset:{c*256} nt")
            else: self.A(f"buffer_load_dwordx4 v[{r}:{r+3}], v5, s[24:27], s{60+t//2} offen offset:{(t&1)*2048+c*256} nt")
        cp = self.cap if t < 8 else self.capv
        if self.pause and (t + 1) % self.pause == 0: self.pz(cp, 16 + t)
    def refresh(self):
        self.A("ds_read_b32 v27, v28", "s_waitcnt lgkmcnt(0)", "v_readfirstlane_b32 s41, v27")
    def adz(self, pos):
        T, T0, mild, strong, strongv = self.ad
        A = self.A
        self.__dict__['uid'] += 1; u = self.uid
        if pos < 24:
            if pos >= 7:
                A("s_cmp_lg_u32 s42, 0", f"s_cbranch_scc1 L_rep{u}", f"L_back{u}:")
                self.outl.extend([f"L_rep{u}:", "    s_mov_b64 exec, 1", "    ds_add_rtn_u32 v27, v28, v29 offset:4", "    s_mov_b64 exec, -1", "    s_waitcnt lgkmcnt(0)",
                    "    v_readfirstlane_b32 s43, v27", "    s_and_b32 s3, s43, 7", "    s_cmp_lg_u32 s3, 7", f"    s_cbranch_scc1 L_back{u}",
                    "    s_add_u32 s3, s52, s43", "    v_mov_b32 v24, s3", "    s_addc_u32 s3, s53, 0", "    v_mov_b32 v25, s3", "    s_mov_b64 exec, 15",
                    "    buffer_store_dwordx2 v[24:25], v26, s[28:31], s40 offen sc1", "    s_mov_b64 exec, -1", f"    s_branch L_back{u}"])
            if pos in (11, 14, 17, 20): self.refresh()
            A("s_cmp_eq_u32 s41, 0", f"s_cbranch_scc1 L_az{u}", f"s_waitcnt vmcnt({mild})", "s_cmp_eq_u32 s41, 1", f"s_cbranch_scc1 L_az{u}", f"s_waitcnt vmcnt({strong})", f"L_az{u}:")
        else:
            A("s_cmp_lg_u32 s41, 2", f"s_cbranch_scc1 L_az{u}", f"s_waitcnt vmcnt({strongv})", f"L_az{u}:")
    def decide(self):
        T, T0, mild, strong, strongv = self.ad
        A = self.A
        A("s_lshr_b32 s3, s55, 1", "s_lshl_b32 s3, s3, 7", f"s_add_u32 s3, s3, {W_PR}", "s_add_u32 s94, s28, s3", "s_addc_u32 s95, s29, 0",
          "s_lshl_b32 s3, s55, 3", "s_load_dwordx16 s[76:91], s[94:95], 0 glc", "s_load_dwordx2 s[92:93], s[94:95], s3 glc", "s_waitcnt lgkmcnt(0)")
        for k in list(range(76, 92, 2)) + [92]:
            A(f"s_sub_u32 s{k}, s{k}, s52", f"s_subb_u32 s{k+1}, s{k+1}, s53", f"s_cmp_eq_u32 s{k+1}, 0", f"s_cselect_b32 s{k}, s{k}, 0",
              f"s_cmp_lt_u32 s{k}, 256", f"s_cselect_b32 s{k}, s{k}, 0")
        for k in range(78, 92, 2): A(f"s_min_u32 s76, s76, s{k}")
        A("s_sub_u32 s92, s92, s76", f"s_cmp_le_i32 s92, {T0}", "s_cselect_b32 s41, 0, s101", f"s_cmp_ge_i32 s92, {T}", "s_cselect_b32 s41, 2, s41",
          "s_cmp_eq_u32 s76, 0", "s_cselect_b32 s41, s101, s41", "v_mov_b32 v27, s41", "ds_write_b32 v28, v27")
        self.note("lead", "s92"); self.note("mode", "s41")
    def pz(self, cap, pos):
        if self.ad and (pos >= self.capfrom):
            self.adz(pos); return
        if cap is None:
            self.A("s_nop 0"); return
        if pos < self.freeto: self.A(f"s_cbranch_scc1 L_z{pos}")
        if self.capodd is not None:
            if self.capodd < 40: self.A(f"s_waitcnt vmcnt({self.capodd})")
            self.A(f"s_cbranch_vccnz L_z{pos}")
        self.A(f"s_waitcnt vmcnt({cap})")
        if pos < self.freeto or self.capodd is not None: self.A(f"L_z{pos}:")
    def st2(self, data, addr, soff, mask, lab):
        self.A(mask, "s_cmp_eq_u32 s99, 1", f"s_cbranch_scc1 {lab}_loc", f"buffer_store_dwordx4 {data}, {addr}, s[28:31], {soff} offen sc1",
               f"s_branch {lab}_done", f"{lab}_loc:", f"buffer_store_dwordx4 {data}, {addr}, s[28:31], {soff} offen", f"{lab}_done:", "s_mov_b64 exec, -1")

    def gen(self):
        A = self.A; C = self.C
        K = NAME + "_kernel"
        hdr = open("cdna_kernels/" + NAME + ".s.ref").read().split("\n")
        for line in hdr:
            if line.startswith("; @launch"): break
            self.L.append(line)
        self.L += [f"; @launch grid=(256,1,1) block=(512,1,1) lds={L_END}",
                   "; One workgroup per CU: id = hkv + 8*(b + 8*split + 16*branch); it owns 512 keys of one (branch, b, hkv), 64 per wave.",
                   "; Stages: q projection (32 columns per workgroup, all batches) -> hand-off -> QK^T, softmax, PV straight from HBM into",
                   "; MFMA operands -> hand-off inside the (branch, hkv) group -> output projection slice -> hand-off -> sum, gate, store.",
                   "; Hand-offs are 16-byte granules {payload, launch tag}; the tag is derived from a word of d_ws that the launch bumps at its end.",
                   '.amdgcn_target "amdgcn-amd-amdhsa--gfx950"',
                   ".text", f".globl {K}", ".p2align 8", f".type {K},@function", f"{K}:"]
        if self.stamps: A("v_mov_b32 v61, 0")
        self.stamp("entry")
        A("s_cmp_ge_u32 s2, 256", "s_cbranch_scc1 L_end")
        A("s_lshr_b32 s57, s2, 7", "s_mul_i32 s3, s57, 40", "s_add_u32 s4, s0, s3", "s_addc_u32 s5, s1, 0",
          "s_load_dwordx8 s[8:15], s[4:5], 8", "s_load_dwordx2 s[28:29], s[0:1], 104",
          "s_load_dwordx2 s[36:37], s[0:1], 0", "s_load_dwordx4 s[48:51], s[0:1], 80")
        C("s54 wave, s55 hkv, s56 member = b + 8*split, s57 branch, s58 group, s71 split, s75 b; v1 lane, v2 lane&15, v3 lane>>4, v15 lane&3")
        def common():
            A("s_lshl_b32 s58, s57, 3", "s_add_u32 s58, s58, s55", "s_and_b32 s75, s56, 7", "s_lshr_b32 s71, s56, 3",
              "s_lshl_b32 s3, s75, 24", "s_lshl_b32 s6, s55, 21", "s_add_u32 s6, s6, s3",
              "s_lshl_b32 s3, s71, 18", "s_add_u32 s6, s6, s3", "s_add_u32 s6, s6, 0x180000")
            C("4 KiB block order inside a wave's 32 KiB, rotated per wave and workgroup so that concurrent streams spread over the channels")
            a_, b_, c_, d_, e_ = self.rc
            A(f"s_mul_i32 s60, s54, {a_}")
            for coef, reg in ((b_, "s75"), (c_, "s55"), (d_, "s71"), (e_, "s57")):
                if coef: A(f"s_mul_i32 s3, {reg}, {coef}", "s_add_u32 s60, s60, s3")
            A("s_lshl_b32 s60, s60, 12", "s_and_b32 s60, s60, 0x7fff")
            for g in range(1, 8): A(f"s_add_u32 s{60+g}, s{59+g}, 4096", f"s_and_b32 s{60+g}, s{60+g}, 0x7fff")
            A(f"s_mov_b32 s70, {self.spin_max}")
            C("v4 = K lane offset: wave*32768 + (i>>2)*512 + j*64 + (i&3)*16 ; v5 = V lane offset: wave*32768 + j*512 + i*16")
            A("s_lshl_b32 s3, s54, 15", "v_lshrrev_b32 v5, 2, v2", "v_lshlrev_b32 v4, 9, v5", "v_lshl_add_u32 v4, v15, 4, v4", "v_lshl_add_u32 v4, v3, 6, v4",
              "v_add_u32 v4, s3, v4", "v_lshl_add_u32 v5, v3, 9, v60", "v_add_u32 v5, s3, v5", "v_lshlrev_b32 v12, 4, v1")
            A(f"s_mov_b32 s30, {W_SIZE}", "s_mov_b32 s31, 0x20000")
            A("s_mov_b32 s22, 0x40000", "s_mov_b32 s23, 0x20000", "s_mov_b32 s26, 0x40000", "s_mov_b32 s27, 0x20000")
            if self.ad:
                A("s_lshr_b32 s3, s56, 2", "s_cmp_eq_u32 s3, 1", "s_cselect_b32 s101, 0, 1", "s_bitcmp1_b32 s2, 0", "s_cselect_b32 s101, 0, s101", "s_mov_b32 s41, s101",
                  "s_cmp_lt_u32 s2, 8", "s_cselect_b32 s42, 1, 0", "s_lshl_b32 s40, s55, 3", f"s_add_u32 s40, s40, {W_PR}",
                  f"v_mov_b32 v28, {L_MODE}", "v_mov_b32 v29, 1", "v_lshlrev_b32 v26, 7, v1")
        self.__dict__["common"] = common
        A("v_lshrrev_b32 v6, 6, v0", "v_and_b32 v1, 63, v0", "v_readfirstlane_b32 s54, v6",
          "v_and_b32 v2, 15, v1", "v_lshrrev_b32 v3, 4, v1", "v_and_b32 v15, 3, v1", "v_lshlrev_b32 v60, 4, v2")
        A("s_and_b32 s55, s2, 7", "s_bfe_u32 s56, s2, 0x40003")
        if not self.fastpro: common()
        A("s_cmp_lt_u32 s54, 4", "s_cbranch_scc1 L_stream0")
        C("================= waves 4..7: q projection of 32 columns, 112 rows of wq per wave =================\n"
          "the slices at 384 mod 1024 bytes are slow to fetch with this stride: they go to workgroups of even id (s93 hkv', s88 slice)")
        A("s_sub_u32 s79, s54, 4")
        A("s_lshr_b32 s3, s56, 1", "s_and_b32 s59, s2, 1", "s_add_u32 s59, s59, 2", "s_cmp_eq_u32 s3, s59", "s_cselect_b32 s3, 1, 0",
          "s_xor_b32 s93, s55, s3", "s_lshl_b32 s3, s3, 1", "s_xor_b32 s88, s56, s3")
        A("s_lshl_b32 s7, s93, 10", "s_lshl_b32 s59, s88, 6", "s_add_u32 s7, s7, s59")
        A("s_mov_b32 s35, 0x20000", "s_sub_u32 s34, 3670016, s7")
        A(f"s_mul_i32 s80, s79, {112*8192}")
        for u in range(1, 4): A(f"s_add_u32 s{80+u}, s80, {u*131072 - (u&3)*1024}")
        A("s_mul_i32 s59, s79, 7168", f"s_add_u32 m0, s59, {L_WQ}")
        A("v_lshrrev_b32 v6, 2, v1", "v_lshlrev_b32 v6, 13, v6", "v_lshl_add_u32 v6, v15, 4, v6")
        A("s_waitcnt lgkmcnt(0)")
        self.stamp("karg")
        A("s_add_u32 s32, s12, s7", "s_addc_u32 s33, s13, 0")
        for u in range(4): A(f"buffer_load_dwordx4 v6, s[32:35], s{80+u} offen offset:{(u&3)*1024} nt lds")
        A("s_add_u32 m0, m0, 4096")
        for u in range(4, 7): A(f"s_add_u32 s{80+u}, s80, {u*131072 - (u&3)*1024}")
        for u in range(4, 7): A(f"buffer_load_dwordx4 v6, s[32:35], s{80+u} offen offset:{(u&3)*1024} nt lds")
        A("s_mov_b32 s38, 7168", "s_mov_b32 s39, 0x20000", "s_mul_i32 s68, s79, 224", f"s_add_u32 s69, s68, {4*896 - 1024}",
          "s_lshl_b32 s87, s79, 11", f"s_add_u32 s87, s87, {L_WO}", "s_mov_b32 m0, s87", "v_mul_u32_u24 v7, 896, v3", "v_add_u32 v7, v7, v60")
        A("buffer_load_dwordx4 v7, s[36:39], s68 offen lds", "buffer_load_dwordx4 v7, s[36:39], s69 offen offset:1024 lds")
        A("s_lshl_b32 s3, s79, 2", f"s_add_u32 s3, s3, {L_FLG}", "v_mov_b32 v9, s3", "v_mov_b32 v8, 0", "ds_write_b32 v9, v8", "s_waitcnt lgkmcnt(0)")
        A("s_barrier")
        A(f"s_add_u32 s94, s28, {W_EPOCH}", "s_addc_u32 s95, s29, 0", "s_load_dwordx2 s[52:53], s[94:95], 0")
        if self.fastpro: common()
        A("s_add_u32 s20, s8, s6", "s_addc_u32 s21, s9, 0", "s_add_u32 s24, s10, s6", "s_addc_u32 s25, s11, 0")
        C("lane group j covers rows 28j..28j+27 of the wave's 112, four per 16x16x16 step")
        A("v_mul_u32_u24 v14, 28, v3", "v_lshrrev_b32 v8, 2, v2", "v_add_u32 v14, v14, v8", "v_lshlrev_b32 v14, 6, v14",
          "v_lshl_add_u32 v14, v15, 3, v14", "v_add_u32 v14, s59, v14")
        A("s_lshl_b32 s3, s79, 11", "v_add_u32 v13, s3, v12")
        if self.xlds:
            A("v_and_b32 v7, 7, v2", "v_lshlrev_b32 v7, 8, v7", "v_mul_u32_u24 v8, 56, v3", "v_add3_u32 v7, v7, v8, s87")
        A("s_waitcnt vmcnt(0) lgkmcnt(0)")
        self.stamp("wqland")
        if self.xlds:
            for st in range(7): A(f"ds_read_b64 v[{64+2*st}:{65+2*st}], v7 offset:{8*st}")
            A("s_waitcnt lgkmcnt(0)")
        for st in range(7):
            for t in range(2):
                r = 80 + 4 * st + 2 * t
                A(f"ds_read_b64_tr_b16 v[{r}:{r+1}], v14 offset:{L_WQ + st*256 + t*32}")
        A("s_add_u32 s52, s52, 0x7f4a7c15", "s_addc_u32 s53, s53, 0x9e3779b9")
        for st in range(7):
            A(f"s_waitcnt lgkmcnt({12 - 2*st})")
            for t in range(2):
                r = 80 + 4 * st + 2 * t
                d = f"v[{48+4*t}:{51+4*t}]"
                A(f"v_mfma_f32_16x16x16_bf16 {d}, v[{r}:{r+1}], v[{64+2*st}:{65+2*st}], {'0' if st == 0 else d}")
        A("v_mov_b32 v10, s52", "v_mov_b32 v11, s53", "v_mov_b32 v8, 1", "s_nop 3")
        A(f"ds_write_b128 v13, v[48:51] offset:{L_QP}", f"ds_write_b128 v13, v[52:55] offset:{L_QP+1024}")
        A("s_cmp_eq_u32 s54, 7", "s_waitcnt lgkmcnt(0)", "s_cbranch_scc1 L_w7")
        A("s_mov_b64 exec, 1", "ds_write_b32 v9, v8", "s_mov_b64 exec, -1", "s_branch L_kloads")
        C("---- wave 7: sum the four partials, publish q and this workgroup's XCC id")
        A("L_w7:")
        A("s_setprio 3")
        A("v_lshrrev_b32 v7, 3, v2", "v_lshl_add_u32 v13, v7, 10, v12", f"v_mov_b32 v9, {L_FLG}")
        A("s_lshl_b32 s74, s58, 14", f"s_add_u32 s74, s74, {W_QX}", "s_lshl_b32 s69, s75, 11", "s_add_u32 s74, s74, s69")
        A("v_and_b32 v6, 7, v2", "v_lshlrev_b32 v6, 11, v6", "v_lshl_add_u32 v6, v7, 6, v6", "v_lshl_add_u32 v6, v3, 4, v6")
        A("s_lshl_b32 s3, s57, 3", "s_add_u32 s3, s3, s93", "s_lshl_b32 s3, s3, 14", f"s_add_u32 s3, s3, {W_QX}", "s_lshl_b32 s69, s88, 7", "s_add_u32 s100, s3, s69")
        A("s_getreg_b32 s96, hwreg(HW_REG_XCC_ID)", "s_lshl_b32 s98, s58, 8", f"s_add_u32 s98, s98, {W_XT}", "s_lshl_b32 s97, s56, 4", "s_add_u32 s97, s97, s98",
          "v_mov_b32 v108, s96", "v_mov_b32 v109, s96", "v_mov_b32 v110, s52", "v_mov_b32 v111, s53")
        A("L_flg:")
        A("ds_read_b96 v[48:50], v9", "s_waitcnt lgkmcnt(0)", "v_add3_u32 v48, v48, v49, v50", "v_cmp_eq_u32 vcc, 3, v48")
        self.spin_check("L_flg", 0)
        for w in range(4): A(f"ds_read_b128 v[{64+4*w}:{67+4*w}], v13 offset:{L_QP + w*2048}")
        A("s_waitcnt lgkmcnt(2)")
        for k in range(4): A(f"v_add_f32 v{64+k}, v{64+k}, v{68+k}")
        A("s_waitcnt lgkmcnt(0)")
        for k in range(4): A(f"v_add_f32 v{72+k}, v{72+k}, v{76+k}")
        for k in range(4): A(f"v_add_f32 v{64+k}, v{64+k}, v{72+k}")
        A("v_cvt_pk_bf16_f32 v8, v64, v65", "v_cvt_pk_bf16_f32 v9, v66, v67")
        self.stamp("qrdy")
        C("slices of the own group: plain store first, repeated with device scope below if a member turns out to be on another XCD")
        A("s_cmp_eq_u32 s93, s55", "s_cbranch_scc1 L_qploc")
        A("buffer_store_dwordx4 v[8:11], v6, s[28:31], s100 offen sc1", "s_branch L_qpdone", "L_qploc:")
        A("buffer_store_dwordx4 v[8:11], v6, s[28:31], s100 offen", "L_qpdone:")
        A("s_mov_b64 exec, 1", "buffer_store_dwordx4 v[108:111], v12, s[28:31], s97 offen sc1", "s_mov_b64 exec, -1")
        A("s_branch L_kloads")
        C("================= waves 0..3 start streaming at once =================")
        A("L_stream0:")
        if self.fastpro: self.common()
        A("s_waitcnt lgkmcnt(0)")
        A(f"s_add_u32 s94, s28, {W_EPOCH}", "s_addc_u32 s95, s29, 0")
        A("s_add_u32 s20, s8, s6", "s_addc_u32 s21, s9, 0", "s_add_u32 s24, s10, s6", "s_addc_u32 s25, s11, 0")
        if self.ad: A("v_mov_b32 v24, s101", "v_mov_b32 v25, 56", "ds_write_b64 v28, v[24:25]", "s_waitcnt lgkmcnt(0)")
        A(f"s_load_dwordx2 s[52:53], s[94:95], 0")
        A("s_barrier")
        C("all 16 K tiles (4 keys each) and the first 8 V tiles; the break after each tile lets the four SIMDs take turns at the address unit.\n"
          "Workgroups of even id (whose XCDs win the fabric arbitration) also bound their loads in flight, which evens out the XCDs' shares;\n"
          "the ones that fetched a slow wq slice are exempt (scc) so that they catch up.")
        A("L_kloads:")
        slowt = ()
        if self.capodd is not None: slowt += ("s_bitcmp1_b32 s2, 0", "s_cselect_b64 vcc, -1, 0")
        if self.freeto:
            if self.slowev: slowt += ("s_lshr_b32 s3, s56, 2", "s_and_b32 s59, s2, 1", "s_lshl_b32 s59, s59, 2", "s_or_b32 s3, s3, s59", "s_cmp_eq_u32 s3, 1")
            else: slowt += ("s_lshr_b32 s3, s56, 1", "s_cmp_eq_u32 s3, 3")
        A(*slowt)
        def qloads():
            A("buffer_load_dwordx4 v[48:51], v12, s[28:31], s74 offen sc1", "buffer_load_dwordx4 v[52:55], v12, s[28:31], s74 offen offset:1024 sc1",
              "buffer_load_dwordx4 v[56:59], v60, s[28:31], s98 offen sc1")
        def qblock(first_wait):
            A(first_wait, "s_branch L_qchk")
            A("L_qpoll:")
            qloads()
            A("s_waitcnt vmcnt(0)")
            A("L_qchk:")
            A(f"v_cmp_eq_u64 vcc, {TAG}, v[50:51]", f"v_cmp_eq_u64 s[68:69], {TAG}, v[54:55]", f"v_cmp_eq_u64 s[90:91], {TAG}, v[58:59]",
              "v_cmp_ne_u32 s[94:95], s96, v56", "s_and_b64 vcc, vcc, s[68:69]", "s_and_b64 vcc, vcc, s[90:91]",
              "s_and_b64 s[94:95], s[94:95], s[90:91]", "s_cbranch_scc0 L_qnorep")
            A("buffer_store_dwordx4 v[8:11], v6, s[28:31], s100 offen sc1", "L_qnorep:")
            self.spin_check("L_qpoll", self.qsleep)
            A("v_lshlrev_b32 v6, 3, v1")
            A(f"ds_write_b64 v6, v[48:49] offset:{L_Q}", f"ds_write_b64 v6, v[52:53] offset:{L_Q+512}")
            C("locality flag: 1 = every member of the group runs on this XCD, so hand-offs inside the group can stay in its L2")
            A("v_cmp_eq_u32 vcc, s96, v56", f"v_mov_b32 v6, {L_FLG + 12}", "s_cmp_eq_u64 vcc, -1", "s_cselect_b32 s3, 1, 0", "v_mov_b32 v7, s3", "ds_write_b32 v6, v7")
            self.stamp("qgot")
            if self.ad: self.decide()
            A("s_setprio 0")
        def setup():
            C("v_perm selectors that place one bf16 probability at element (lane&7) of an otherwise zero fragment: v32+2x+parity")
            A("v_and_b32 v6, 1, v2", "v_cmp_eq_u32 vcc, 1, v6",
              "v_mov_b32 v7, 0x0c0c0100", "v_mov_b32 v8, 0x01000c0c", "v_mov_b32 v9, 0x0c0c0302", "v_mov_b32 v10, 0x03020c0c",
              "v_cndmask_b32 v7, v7, v8, vcc", "v_cndmask_b32 v9, v9, v10, vcc", "v_bfe_u32 v6, v2, 1, 2", "v_mov_b32 v8, 0x0c0c0c0c")
            for x in range(4):
                A(f"v_cmp_eq_u32 vcc, {x}, v6", "s_nop 1", f"v_cndmask_b32 v{32+2*x}, v8, v7, vcc", f"v_cndmask_b32 v{33+2*x}, v8, v9, vcc")
            C("---- addresses of the later stages (v48..v59, s72..s74, s80..s91)")
            A("v_and_b32 v9, 1, v3", "v_lshrrev_b32 v10, 1, v3")
            A("v_lshlrev_b32 v48, 10, v10", "v_lshl_add_u32 v48, v2, 5, v48", "v_lshl_add_u32 v48, v9, 4, v48",
              "s_lshl_b32 s3, s54, 11", "v_add_u32 v48, s3, v48")
            A("v_lshlrev_b32 v49, 6, v2", "v_lshl_add_u32 v49, v3, 4, v49")
            A("s_lshl_b32 s72, s58, 15", f"s_add_u32 s72, s72, {W_H1O}", "s_lshl_b32 s90, s71, 14", "s_add_u32 s90, s90, s72", "s_add_u32 s90, s90, s3")
            A("s_lshl_b32 s91, s58, 9", f"s_add_u32 s91, s91, {W_H1ML}", "s_lshr_b32 s3, s54, 1", "s_lshl_b32 s3, s3, 8", "s_add_u32 s74, s91, s3",
              "s_lshl_b32 s3, s56, 4", "s_add_u32 s74, s74, s3", "s_lshl_b32 s3, s71, 8", "s_add_u32 s91, s91, s3")
            A("s_lshl_b32 s73, s58, 1", "s_add_u32 s73, s73, s71", "s_lshl_b32 s73, s73, 8", "s_lshl_b32 s59, s75, 17", "s_add_u32 s73, s73, s59",
              f"s_add_u32 s73, s73, {W_H2}")
            if self.opmode == 0:
                A("v_lshl_add_u32 v50, v9, 3, v10", "s_lshl_b32 s3, s54, 1", "v_add_u32 v50, s3, v50",
                  f"v_mul_u32_u24 v51, {YROW}, v50", "v_lshl_add_u32 v51, v2, 4, v51", "v_lshlrev_b32 v50, 4, v50")
                A("v_lshrrev_b32 v52, 2, v2", "v_lshl_add_u32 v52, v3, 2, v52", "v_lshlrev_b32 v52, 7, v52", "v_lshl_add_u32 v52, v15, 3, v52",
                  "s_lshl_b32 s3, s54, 12", f"s_add_u32 s3, s3, {L_WO}", "v_add_u32 v52, s3, v52")
                A(f"v_mul_u32_u24 v53, {YROW}, v2", "v_lshl_add_u32 v53, v3, 4, v53", f"s_mul_i32 s3, s54, {YWAVE}", "v_add_u32 v53, s3, v53")
                A("s_lshl_b32 s59, s54, 15", "s_add_u32 s73, s73, s59")
                A("v_lshlrev_b32 v58, 14, v10", "v_lshrrev_b32 v8, 3, v2", "v_lshl_add_u32 v58, v8, 13, v58", "v_and_b32 v8, 7, v2",
                  "v_lshl_add_u32 v58, v8, 5, v58", "v_lshl_add_u32 v58, v9, 4, v58")
            else:
                if self.late or self.hyb:
                    A("v_lshrrev_b32 v52, 2, v2", "v_lshl_add_u32 v52, v3, 2, v52", "v_bfe_u32 v8, v52, 1, 2", "v_xor_b32 v8, s54, v8", "v_and_b32 v8, 3, v8",
                      "v_lshlrev_b32 v52, 7, v52", "v_lshl_add_u32 v52, v15, 3, v52", "v_lshl_add_u32 v52, v8, 5, v52", f"v_add_u32 v52, {L_WO}, v52")
                else:
                    A("v_lshrrev_b32 v52, 2, v2", "v_lshl_add_u32 v52, v3, 2, v52", "v_lshlrev_b32 v52, 7, v52", "v_lshl_add_u32 v52, v15, 3, v52",
                      "s_lshl_b32 s3, s54, 5", f"s_add_u32 s3, s3, {L_WO}", "v_add_u32 v52, s3, v52")
                A("s_lshl_b32 s3, s54, 10", "v_add_u32 v53, s3, v12")
                A("v_and_b32 v8, 7, v2", "v_lshlrev_b32 v58, 14, v8", "v_lshl_add_u32 v58, v3, 5, v58", "v_lshrrev_b32 v8, 3, v2", "v_lshl_add_u32 v58, v8, 4, v58")
                A("s_lshr_b32 s59, s54, 1", "s_lshl_b32 s59, s59, 13", "s_add_u32 s73, s73, s59", "s_and_b32 s59, s54, 1", "s_lshl_b32 s59, s59, 7", "s_add_u32 s73, s73, s59")
            A("v_lshrrev_b32 v6, 5, v1", "v_and_b32 v7, 31, v1", "v_lshlrev_b32 v54, 13, v6", "v_lshl_add_u32 v54, v7, 4, v54",
              "s_lshl_b32 s3, s54, 9", "v_add_u32 v54, s3, v54",
              "s_lshr_b32 s3, s54, 1", "s_lshl_b32 s3, s3, 6", "v_lshlrev_b32 v57, 4, v6", "v_add_u32 v57, s3, v57")
            A("v_lshrrev_b32 v6, 3, v1", "v_and_b32 v7, 7, v1", "v_lshrrev_b32 v56, 2, v1", "v_lshlrev_b32 v56, 10, v56", "v_lshl_add_u32 v56, v15, 4, v56",
              "v_mul_u32_u24 v55, 896, v6", *(("v_lshlrev_b32 v8, 1, v3", "v_xor_b32 v7, v7, v8") if (self.late or self.hyb) else ()), "v_lshl_add_u32 v55, v7, 4, v55")
            A("s_lshl_b32 s3, s54, 13", "s_add_u32 s72, s72, s3", "s_lshl_b32 s3, s56, 6", "s_add_u32 s72, s72, s3")
            A("v_lshrrev_b32 v6, 3, v2", "v_lshlrev_b32 v59, 6, v6", "s_lshl_b32 s3, s54, 2", "v_add_u32 v59, s3, v59")
            A("s_cmp_lt_u32 s2, 128", "s_cselect_b32 s89, 1, 0", "s_cmp_lt_u32 s55, 7", "s_cselect_b32 s89, s89, 0")
            A("s_lshl_b32 s3, s55, 1", "s_add_u32 s3, s3, s71", "s_mul_i32 s3, s3, 229376", "s_lshl_b32 s59, s75, 7", "s_add_u32 s3, s3, s59",
              "s_add_u32 s32, s14, s3", "s_addc_u32 s33, s15, 0", "s_sub_u32 s34, 3670016, s3", "s_mov_b32 s35, 0x20000")
            A(f"s_mul_i32 s80, s54, {64*896}", "s_lshl_b32 s59, s54, 13", f"s_add_u32 m0, s59, {L_WO}")
            for u in range(1, 8): A(f"s_add_u32 s{80+u}, s80, {u*7168 - (u&3)*1024}")
            A("v_lshlrev_b32 v6, 9, v6", "v_lshl_add_u32 v6, v15, 4, v6", "v_lshl_add_u32 v30, v3, 6, v6")
        seq = [("k", t) for t in range(16)] + [("v", t) for t in range(8)]
        chk = 24 if self.chkat is None else min(24, self.pollat + self.chkat)
        for n, (kind, t) in enumerate(seq):
            (self.kload if kind == "k" else self.vload)(t)
            if n + 1 == 6 and self.earlysetup:
                A("s_cmp_eq_u32 s54, 7", "s_cbranch_scc1 L_nosetup")
                setup()
                if self.ad: A("s_cmp_ge_u32 s54, 4", "s_waitcnt lgkmcnt(0)", "s_cbranch_scc1 L_nosetup", "s_add_u32 s52, s52, 0x7f4a7c15", "s_addc_u32 s53, s53, 0x9e3779b9")
                A("L_nosetup:", *slowt)
            if n + 1 == self.pollat and not self.nohelp:
                A("s_cmp_lg_u32 s54, 7", "s_cbranch_scc1 L_nopoll1")
                qloads()
                self.stamp("qpoll")
                A("L_nopoll1:", *slowt)
            if n + 1 == chk and not self.nohelp:
                A("s_cmp_lg_u32 s54, 7", "s_cbranch_scc1 L_nochk")
                qblock(f"s_waitcnt vmcnt({2*(chk-self.pollat)})")
                A("L_nochk:", *slowt)
        A("L_noq:")
        if not self.ad:
            A("s_cmp_ge_u32 s54, 4", "s_waitcnt lgkmcnt(0)", "s_cbranch_scc1 L_tagdone")
            A("s_add_u32 s52, s52, 0x7f4a7c15", "s_addc_u32 s53, s53, 0x9e3779b9")
            A("L_tagdone:")
        if self.earlysetup:
            A("s_cmp_lg_u32 s54, 7", "s_cbranch_scc1 L_setupdone")
            if self.ad: self.decide()
            setup()
            A("L_setupdone:")
        else:
            setup()
        A("v_mov_b32 v7, -1", "s_mov_b64 exec, 0x101", f"ds_write_b32 v59, v7 offset:{L_ML}", "s_mov_b64 exec, -1", "s_waitcnt lgkmcnt(0)")
        self.stamp("qbar")
        A("s_barrier")
        A(f"ds_read_b128 v[16:19], v30 offset:{L_Q}", f"ds_read_b128 v[20:23], v30 offset:{L_Q+256}", f"v_mov_b32 v7, {L_FLG + 12}", "ds_read_b32 v7, v7")
        if self.ad: A("ds_read_b32 v27, v28")
        A("s_waitcnt lgkmcnt(0)", "v_readfirstlane_b32 s99, v7")
        if self.ad: A("v_readfirstlane_b32 s41, v27")
        C("================= QK^T: row (key, quarter) x column (quarter, head); the diagonal quarters are summed below =================")
        def qk(ilv):
            for t in range(16):
                r = 128 + 8 * t
                A(f"s_waitcnt vmcnt({30 - 2*t + 16 + (2*(t//2) if ilv else 0)})")
                A(f"v_mfma_f32_16x16x32_bf16 v[{r}:{r+3}], v[{r}:{r+3}], v[16:19], 0")
                A(f"v_mfma_f32_16x16x32_bf16 v[{r}:{r+3}], v[{r+4}:{r+7}], v[20:23], v[{r}:{r+3}]")
                if ilv and t & 1: self.vload(8 + t // 2)
        if self.qkilv:
            A("s_cmp_ge_u32 s54, 4", "s_cbranch_scc1 L_qk47", "s_setprio 2")
            qk(True)
            A("s_setprio 0", "s_branch L_nov1", "L_qk47:")
            qk(False)
            A("L_nov1:")
        else:
            qk(False)
            A("s_cmp_ge_u32 s54, 4", "s_cbranch_scc1 L_nov1", "s_setprio 2")
            for t in range(8, 16): self.vload(t)
            A("s_setprio 0")
            A("L_nov1:")
        self.stamp("Viss1")
        S = lambda t: 128 + 8 * t
        for t in range(16): A(f"v_mov_b32_dpp v{S(t)}, v{S(t)} quad_perm:[0,0,0,0] {DPPM}")
        for x in range(1, 4):
            for t in range(16): A(f"v_add_f32_dpp v{S(t)}, v{S(t)+x}, v{S(t)} quad_perm:[{x},{x},{x},{x}] {DPPM}")
        C("scores rounded to bf16 as in the reference, then the wave's max, exp2 and row sum")
        for u in range(8): A(f"v_cvt_pk_bf16_f32 v{40+u}, v{S(2*u)}, v{S(2*u+1)}")
        for u in range(8): A(f"v_lshlrev_b32 v{S(2*u)}, 16, v{40+u}", f"v_and_b32 v{S(2*u+1)}, 0xffff0000, v{40+u}")
        A(f"v_max3_f32 v6, v{S(0)}, v{S(1)}, v{S(2)}", f"v_max3_f32 v7, v{S(3)}, v{S(4)}, v{S(5)}", f"v_max3_f32 v8, v{S(6)}, v{S(7)}, v{S(8)}",
          f"v_max3_f32 v9, v{S(9)}, v{S(10)}, v{S(11)}", f"v_max3_f32 v10, v{S(12)}, v{S(13)}, v{S(14)}", f"v_max3_f32 v6, v6, v7, v{S(15)}",
          "v_max3_f32 v8, v8, v9, v10", "v_max_f32 v6, v6, v8")
        self.xrow(6, 7, "v_max_f32")
        A(f"s_mov_b32 s3, {CSCALE}", "v_mul_f32 v6, s3, v6")
        for t in range(16): A(f"v_fma_f32 v{S(t)}, v{S(t)}, s3, -v6")
        for t in range(16): A(f"v_exp_f32 v{S(t)}, v{S(t)}")
        A("v_min_u32 v6, -2, v6")
        for u in range(8): A(f"v_cvt_pk_bf16_f32 v{40+u}, v{S(2*u)}, v{S(2*u+1)}")
        for u in range(8): A(f"v_add_f32 v{S(2*u)}, v{S(2*u)}, v{S(2*u+1)}")
        for u in range(4): A(f"v_add_f32 v{S(4*u)}, v{S(4*u)}, v{S(4*u+2)}")
        A(f"v_add_f32 v{S(0)}, v{S(0)}, v{S(4)}", f"v_add_f32 v{S(8)}, v{S(8)}, v{S(12)}", f"v_add_f32 v7, v{S(0)}, v{S(8)}")
        self.xrow(7, 8, "v_add_f32")
        A("s_mov_b64 exec, 0x101", f"ds_write_b32 v59, v7 offset:{L_ML+32}", f"ds_write_b32 v59, v6 offset:{L_ML}", "s_mov_b64 exec, -1")
        for t in range(16):
            for x in range(4): A(f"v_perm_b32 v{128+8*t+x}, v{40+t//2}, v{40+t//2}, v{32+2*x+(t&1)}")
        A("s_cmp_lt_u32 s54, 4", "s_cbranch_scc1 L_nov2", "s_setprio 1")
        for t in range(8, 16): self.vload(t)
        A("L_nov2:")
        self.stamp("Viss")
        C("================= PV: rows (head, element), columns 16-byte chunks of V =================")
        for t in range(16):
            f = 128 + 8 * t
            A(f"s_waitcnt vmcnt({30 - 2*t})")
            for c in range(2):
                acc = f"v[{24+4*c}:{27+4*c}]"
                rv = self.vreg(t, c)
                A(f"v_mfma_f32_16x16x32_bf16 {acc}, v[{f}:{f+3}], v[{rv}:{rv+3}], {'0' if t == 0 else acc}")
        A("s_nop 7")
        A(f"ds_write_b128 v48, v[24:27] offset:{L_PART}", f"ds_write_b128 v48, v[28:31] offset:{L_PART+512}")
        self.stamp("PVend")
        A("s_cmp_ge_u32 s54, 4", "s_cbranch_scc1 L_barA", "s_cmp_eq_u32 s75, 7", "s_cbranch_scc1 L_nowo")
        C("waves 0..3: wo slice (head 2*hkv+split, columns 64*b..64*b+63) behind the last V loads")
        for u in range(8):
            if u == 4: A("s_add_u32 m0, m0, 4096", "s_nop 0")
            A(f"buffer_load_dwordx4 v55, s[32:35], s{80+u} offen offset:{(u&3)*1024} nt lds")
        self.stamp("woiss")
        A("L_nowo:")
        C("waves 0..3 (head w>>1): factors that bring the eight waves to the workgroup's max; max and row sum are published here")
        A("v_xor_b32 v8, 16, v57")
        A("L_ml:")
        A(f"ds_read_b128 v[64:67], v57 offset:{L_ML}", f"ds_read_b128 v[68:71], v8 offset:{L_ML}", f"ds_read_b128 v[72:75], v57 offset:{L_ML+32}")
        A("s_waitcnt lgkmcnt(0)")
        A("v_max3_u32 v6, v64, v65, v66", "v_max3_u32 v7, v67, v68, v69", "v_max3_u32 v6, v6, v70, v71", "v_max_u32 v6, v6, v7", "v_cmp_ne_u32 vcc, -1, v6")
        self.spin_check("L_ml", 1)
        A("v_max3_f32 v116, v64, v65, v66", "v_max3_f32 v7, v67, v68, v69", "v_max3_f32 v116, v116, v70, v71", "v_max_f32 v116, v116, v7")
        for k in range(4): A(f"v_sub_f32 v{64+k}, v{64+k}, v116")
        for k in range(4): A(f"v_exp_f32 v{64+k}, v{64+k}")
        A("v_mov_b32 v114, s52", "v_mov_b32 v115, s53", "v_mov_b32 v118, s52", "v_mov_b32 v119, s53")
        A("v_mul_f32 v117, v64, v72", "v_fmac_f32 v117, v65, v73", "v_fmac_f32 v117, v66, v74", "v_fmac_f32 v117, v67, v75")
        A("v_mov_b32 v7, v117", "s_nop 1", "v_permlane32_swap_b32 v117, v7", "v_add_f32 v117, v117, v7")
        if not self.skiptail: self.st2("v[116:119]", "v12", "s74", "s_mov_b64 exec, 1", "L_pml")
        A("L_barA:")
        A("s_waitcnt lgkmcnt(0)", "s_barrier")
        self.stamp("barA")
        if self.skiptail: A("s_branch L_done")
        A("s_cmp_ge_u32 s54, 4", "s_cbranch_scc1 L_gather")
        for k in range(4): A(f"ds_read_b128 v[{80+4*k}:{83+4*k}], v54 offset:{L_PART + k*2048}")
        A("s_waitcnt lgkmcnt(3)")
        for j in range(4): A(f"v_mul_f32 v{120+j}, v64, v{80+j}")
        for k in range(1, 4):
            A(f"s_waitcnt lgkmcnt({3-k})")
            for j in (0, 2, 1, 3): A(f"v_fmac_f32 v{120+j}, v{64+k}, v{80+4*k+j}")
        A("s_nop 0", "v_permlane32_swap_b32 v120, v122", "v_permlane32_swap_b32 v121, v123",
          "v_add_f32 v120, v120, v122", "v_add_f32 v121, v121, v123", "v_cvt_pk_bf16_f32 v112, v120, v121", "v_mov_b32 v113, v112", "s_nop 1",
          "v_permlane32_swap_b32 v112, v113")
        self.st2("v[112:115]", "v56", "s72", "s_mov_b32 exec_hi, 0", "L_po")
        self.stamp("h1pub")
        if not (self.late or self.hyb): A("s_waitcnt vmcnt(2)")
        A("s_branch L_gather2")
        A("L_gather:")
        C("wave 7 of the final-stage workgroups fetches the gate inputs now")
        A("s_cmp_lg_u32 s54, 7", "s_cbranch_scc1 L_gather2", "s_cmp_eq_u32 s89, 0", "s_cbranch_scc1 L_gather2")
        A("s_mul_i32 s59, s75, 896", "s_add_u32 s36, s36, s59", "s_addc_u32 s37, s37, 0", "s_mov_b32 s38, 896", "s_mov_b32 s39, 0x20000")
        A("s_mov_b32 s40, s48", "s_mov_b32 s41, s49", "s_mov_b32 s42, 896", "s_mov_b32 s43, 0x20000")
        A("buffer_load_dwordx4 v[16:19], v12, s[36:39], 0 offen", "buffer_load_dwordx4 v[20:23], v12, s[40:43], 0 offen nt")
        A("L_gather2:")
        A("s_cmp_eq_u32 s75, 7", "s_cbranch_scc1 L_final")
        A("s_barrier")
        self.stamp("barB")
        mlv = "v50" if self.opmode == 0 else "v60"
        def h1loads(lab):
            A("buffer_load_dwordx4 v[64:67], v49, s[28:31], s90 offen sc1", "buffer_load_dwordx4 v[68:71], v49, s[28:31], s90 offen offset:1024 sc1")
            A("s_cmp_ge_u32 s54, 4", f"s_cbranch_scc1 {lab}", f"buffer_load_dwordx4 v[72:75], {mlv}, s[28:31], s91 offen sc1")
        A("v_mov_b32 v72, 0", "v_mov_b32 v73, 0", "v_mov_b32 v74, s52", "v_mov_b32 v75, s53")
        if self.opmode == 0:
            for t in range(4):
                for hf in range(2):
                    r = 80 + 4 * t + 2 * hf
                    A(f"ds_read_b64_tr_b16 v[{r}:{r+1}], v52 offset:{t*32 + hf*2048}")
        elif self.hyb:
            h1loads("L_hyb")
            A("s_waitcnt vmcnt(5)", "s_barrier")
            for ks in range(8):
                for hf in range(2):
                    r = 128 + 4 * ks + 2 * hf
                    A(f"ds_read_b64_tr_b16 v[{r}:{r+1}], v52 offset:{ks*4096 + hf*2048}")
            A("s_branch L_h1noml", "L_hyb:", "s_barrier", "s_branch L_h1noml")
        elif not self.late:
            h1loads("L_h1noml")
            for ks in range(8):
                for hf in range(2):
                    r = 128 + 4 * ks + 2 * hf
                    A(f"ds_read_b64_tr_b16 v[{r}:{r+1}], v52 offset:{ks*4096 + hf*2048}")
            A("s_branch L_h1noml")
        A("L_h1poll:")
        h1loads("L_h1noml")
        A("L_h1noml:")
        A("s_waitcnt vmcnt(0)")
        A(f"v_cmp_eq_u64 vcc, {TAG}, v[66:67]", f"v_cmp_eq_u64 s[68:69], {TAG}, v[70:71]", f"v_cmp_eq_u64 s[94:95], {TAG}, v[74:75]",
          "s_nop 0", "s_and_b64 vcc, vcc, s[68:69]", "s_and_b64 vcc, vcc, s[94:95]")
        self.spin_masked("L_h1poll", self.h1sleep)
        A("v_mov_b32 v66, v68", "v_mov_b32 v67, v69")
        if self.opmode == 0:
            A("s_nop 0")
            self.stamp("h1ok")
            A("s_waitcnt lgkmcnt(0)")
            for t in range(4): A(f"v_mfma_f32_16x16x32_bf16 v[{96+4*t}:{99+4*t}], v[{80+4*t}:{83+4*t}], v[64:67], 0")
            A("v_mov_b32 v74, v72", "v_mov_b32 v75, v73", "v_mov_b32 v68, v72", "s_nop 0")
            A("v_permlane16_swap_b32 v74, v72", "v_permlane16_swap_b32 v75, v73")
            A(f"ds_write_b128 v53, v[96:99] offset:{L_YP}")
            A("v_max_f32 v69, v74, v72", "v_sub_f32 v74, v74, v69")
            A(f"ds_write_b128 v53, v[100:103] offset:{L_YP+64}")
            A("v_sub_f32 v72, v72, v69", "v_sub_f32 v68, v68, v69")
            A(f"ds_write_b128 v53, v[104:107] offset:{L_YP+128}")
            A("v_exp_f32 v74, v74", "v_exp_f32 v72, v72")
            A(f"ds_write_b128 v53, v[108:111] offset:{L_YP+192}")
            A("v_exp_f32 v68, v68", "v_mul_f32 v75, v75, v74", "v_fmac_f32 v75, v73, v72", "v_rcp_f32 v75, v75", "s_nop 0", "v_mul_f32 v112, v68, v75")
            A("s_waitcnt lgkmcnt(0)", "s_barrier")
            A("s_cmp_ge_u32 s54, 4", "s_cbranch_scc1 L_final")
            for w in range(8): A(f"ds_read_b128 v[{64+4*w}:{67+4*w}], v51 offset:{L_YP + w*YWAVE}")
            A("v_mov_b32 v98, s52", "v_mov_b32 v99, s53")
            A("s_waitcnt lgkmcnt(6)")
            for k in range(4): A(f"v_add_f32 v{64+k}, v{64+k}, v{68+k}")
            A("s_waitcnt lgkmcnt(4)")
            for k in range(4): A(f"v_add_f32 v{72+k}, v{72+k}, v{76+k}")
            A("s_waitcnt lgkmcnt(2)")
            for k in range(4): A(f"v_add_f32 v{80+k}, v{80+k}, v{84+k}")
            for k in range(4): A(f"v_add_f32 v{64+k}, v{64+k}, v{72+k}")
            A("s_waitcnt lgkmcnt(0)")
            for k in range(4): A(f"v_add_f32 v{88+k}, v{88+k}, v{92+k}")
            for k in range(4): A(f"v_add_f32 v{64+k}, v{64+k}, v{80+k}")
            for k in range(4): A(f"v_add_f32 v{64+k}, v{64+k}, v{88+k}")
            for k in range(4): A(f"v_mul_f32 v{64+k}, v{64+k}, v112")
            A("s_nop 1")
            A("v_permlane16_swap_b32 v64, v66", "v_permlane16_swap_b32 v65, v67")
            A("v_add_f32 v96, v64, v66", "v_add_f32 v97, v65, v67")
            A("buffer_store_dwordx4 v[96:99], v58, s[28:31], s73 offen sc1")
        else:
            C("every wave leaves its k-step of o (16 columns: batch x split) in LDS; waves 0..3 run one 16-column tile of the projection each")
            A(f"ds_write_b128 v53, v[64:67] offset:{L_YP}")
            self.stamp("h1ok")
            C("normalisation of column i: exp2(M_i - M) / (L_i exp2(M_i - M) + L_i' exp2(M_i' - M)), i' = the other split")
            A(f"v_mov_b32_dpp v74, v72 row_ror:8 {DPPM}", f"v_mov_b32_dpp v75, v73 row_ror:8 {DPPM}")
            A("v_max_f32 v69, v74, v72", "v_sub_f32 v74, v74, v69", "v_sub_f32 v72, v72, v69", "v_exp_f32 v74, v74", "v_exp_f32 v72, v72",
              "v_mov_b32 v98, s52", "v_mul_f32 v75, v75, v74", "v_fmac_f32 v75, v73, v72", "v_rcp_f32 v75, v75", "v_mov_b32 v99, s53", "v_mul_f32 v112, v72, v75")
            A("s_waitcnt lgkmcnt(0)", "s_barrier")
            A("s_cmp_ge_u32 s54, 4", "s_cbranch_scc1 L_final")
            def rd(ks):
                if self.late:
                    for hf in range(2):
                        r = 128 + 4 * ks + 2 * hf
                        A(f"ds_read_b64_tr_b16 v[{r}:{r+1}], v52 offset:{ks*4096 + hf*2048}")
                A(f"ds_read_b128 v[{64+4*ks}:{67+4*ks}], v12 offset:{L_YP + ks*1024}")
            AH = 5 if self.late else 8
            for ks in range(AH): rd(ks)
            for ks in range(8):
                if self.late:
                    A(f"s_waitcnt lgkmcnt({3 * (min(ks + AH, 8) - ks - 1)})")
                else:
                    A(f"s_waitcnt lgkmcnt({7-ks})")
                d = "v[100:103]" if ks & 1 else "v[104:107]"
                A(f"v_mfma_f32_16x16x32_bf16 {d}, v[{128+4*ks}:{131+4*ks}], v[{64+4*ks}:{67+4*ks}], {'0' if ks < 2 else d}")
                if ks + AH < 8: rd(ks + AH)
            A("s_nop 7")
            for k in range(4): A(f"v_add_f32 v{100+k}, v{100+k}, v{104+k}")
            for k in range(4): A(f"v_mul_f32 v{100+k}, v{100+k}, v112")
            C("lanes 0..7 of a row keep columns 0,1 and lanes 8..15 columns 2,3, each summed over the two splits")
            A(f"v_add_f32_dpp v96, v100, v100 row_ror:8 row_mask:0xf bank_mask:0x3", f"v_add_f32_dpp v97, v101, v101 row_ror:8 row_mask:0xf bank_mask:0x3", "s_nop 0",
              f"v_add_f32_dpp v96, v102, v102 row_ror:8 row_mask:0xf bank_mask:0xc", f"v_add_f32_dpp v97, v103, v103 row_ror:8 row_mask:0xf bank_mask:0xc")
            A("buffer_store_dwordx4 v[96:99], v58, s[28:31], s73 offen sc1")
        A("L_final:")
        self.stamp("h2pub")
        A("s_cmp_eq_u32 s89, 0", "s_cbranch_scc1 L_done")
        C("================= final stage: 32 output columns of one batch row (column block wg&7, half = split) =================")
        A("s_lshl_b32 s3, s55, 17", "s_lshl_b32 s59, s75, 14", "s_add_u32 s3, s3, s59", "s_lshl_b32 s59, s71, 13", "s_add_u32 s3, s3, s59",
          "s_lshl_b32 s59, s54, 10", "s_add_u32 s3, s3, s59", f"s_add_u32 s3, s3, {W_H2}", "v_lshlrev_b32 v13, 3, v0")
        A("s_mov_b32 s44, s50", "s_mov_b32 s45, s51", "s_mov_b32 s46, 7168", "s_mov_b32 s47, 0x20000")
        A("s_mul_i32 s59, s75, 896", "s_lshl_b32 s78, s55, 7", "s_add_u32 s78, s78, s59", "s_lshl_b32 s59, s71, 6", "s_add_u32 s78, s78, s59")
        A("v_lshrrev_b32 v14, 3, v1", "v_lshlrev_b32 v14, 9, v14", "v_and_b32 v11, 7, v1", "v_lshl_add_u32 v14, v11, 4, v14",
          "v_lshlrev_b32 v11, 3, v11", "v_lshl_add_u32 v11, v3, 2, v11")
        A("s_cmp_lg_u32 s54, 7", "s_cbranch_scc1 L_nogate")
        C("g = sigmoid(sum(x * gate_w)) with the reference's bf16 roundings; v62 = g, v63 = 1 - g")
        A("s_waitcnt vmcnt(0)")
        for k in range(4):
            A(f"v_lshlrev_b32 v{136+2*k}, 16, v{16+k}", f"v_and_b32 v{137+2*k}, 0xffff0000, v{16+k}",
              f"v_lshlrev_b32 v{144+2*k}, 16, v{20+k}", f"v_and_b32 v{145+2*k}, 0xffff0000, v{20+k}")
        for k in range(8): A(f"v_mul_f32 v{136+k}, v{136+k}, v{144+k}")
        for k in range(4): A(f"v_cvt_pk_bf16_f32 v{128+k}, v{136+2*k}, v{137+2*k}")
        for k in range(4): A(f"v_lshlrev_b32 v{136+2*k}, 16, v{128+k}", f"v_and_b32 v{137+2*k}, 0xffff0000, v{128+k}")
        for k in range(4): A(f"v_add_f32 v{136+k}, v{136+k}, v{140+k}")
        A("v_add_f32 v136, v136, v138", "v_add_f32 v137, v137, v139", "v_add_f32 v62, v136, v137")
        for sh in (8, 4, 2, 1): A("s_nop 1", f"v_add_f32_dpp v62, v62, v62 row_ror:{sh} {DPPM}")
        self.xrow(62, 63, "v_add_f32")
        A("v_cvt_pk_bf16_f32 v62, v62, v62", "v_lshlrev_b32 v62, 16, v62", f"v_mul_f32 v62, {hex(LOG2E | 0x80000000)}, v62",
          "v_exp_f32 v62, v62", "s_nop 0", "v_add_f32 v62, 1.0, v62", "v_rcp_f32 v62, v62", "s_nop 0",
          "v_cvt_pk_bf16_f32 v62, v62, v62", "v_lshlrev_b32 v62, 16, v62",
          "v_sub_f32 v63, 1.0, v62", "v_cvt_pk_bf16_f32 v63, v63, v63", "v_lshlrev_b32 v63, 16, v63")
        A("s_branch L_h2poll")
        A("L_nogate:")
        if self.h2sleep0: A(f"s_sleep {self.h2sleep0}")
        A("L_h2poll:")
        if self.h2pipe:
            A("buffer_load_dwordx4 v[80:83], v12, s[28:31], s3 offen sc1", f"s_sleep {self.h2pipe}", "buffer_load_dwordx4 v[84:87], v12, s[28:31], s3 offen sc1")
            A("L_h2p:")
            for r in (80, 84):
                A("s_waitcnt vmcnt(1)", f"v_cmp_eq_u64 vcc, {TAG}, v[{r+2}:{r+3}]", "s_andn2_b64 s[92:93], exec, vcc", "s_mov_b64 exec, vcc",
                  f"v_mov_b32 v68, v{r}", f"v_mov_b32 v69, v{r+1}", "s_mov_b64 exec, s[92:93]", "s_cbranch_execz L_h2p_ok",
                  f"buffer_load_dwordx4 v[{r}:{r+3}], v12, s[28:31], s3 offen sc1")
            A("s_sub_u32 s70, s70, 1", "s_cmp_gt_i32 s70, 0", "s_cbranch_scc1 L_h2p", "L_h2p_ok:", "s_mov_b64 exec, -1")
        else:
            A("buffer_load_dwordx4 v[68:71], v12, s[28:31], s3 offen sc1", "s_waitcnt vmcnt(0)", f"v_cmp_eq_u64 vcc, {TAG}, v[70:71]")
            self.spin_masked("L_h2poll", self.h2sleep)
        A(f"ds_write_b64 v13, v[68:69] offset:{L_FIN}")
        self.stamp("h2ok")
        A("s_waitcnt lgkmcnt(0)", "s_barrier")
        A("s_cmp_lg_u32 s54, 7", "s_cbranch_scc1 L_done")
        for k in range(4): A(f"ds_read_b128 v[{64+4*k}:{67+4*k}], v14 offset:{L_FIN + k*128}")
        A("s_waitcnt lgkmcnt(2)")
        for k in range(4): A(f"v_add_f32 v{64+k}, v{64+k}, v{68+k}")
        A("s_waitcnt lgkmcnt(0)")
        for k in range(4): A(f"v_add_f32 v{72+k}, v{72+k}, v{76+k}")
        for k in range(4): A(f"v_add_f32 v{64+k}, v{64+k}, v{72+k}")
        C("lanes 0..31 hold branch A, lanes 32..63 branch B; even rows end with columns 0,1 of the quad, odd rows with columns 2,3")
        A("s_nop 1")
        A("v_permlane16_swap_b32 v64, v66", "v_permlane16_swap_b32 v65, v67")
        A("v_add_f32 v64, v64, v66", "v_add_f32 v65, v65, v67")
        A("s_nop 0", f"v_add_f32_dpp v64, v64, v64 row_ror:8 {DPPM}", f"v_add_f32_dpp v65, v65, v65 row_ror:8 {DPPM}")
        A("v_cvt_pk_bf16_f32 v64, v64, v65", "v_mov_b32 v66, v64", "s_nop 1", "v_permlane32_swap_b32 v64, v66")
        A("v_lshlrev_b32 v68, 16, v64", "v_and_b32 v69, 0xffff0000, v64", "v_lshlrev_b32 v70, 16, v66", "v_and_b32 v71, 0xffff0000, v66")
        A("v_mul_f32 v68, v62, v68", "v_mul_f32 v69, v62, v69", "v_mul_f32 v70, v63, v70", "v_mul_f32 v71, v63, v71")
        A("v_cvt_pk_bf16_f32 v64, v68, v69", "v_cvt_pk_bf16_f32 v66, v70, v71")
        A("v_lshlrev_b32 v68, 16, v64", "v_and_b32 v69, 0xffff0000, v64", "v_lshlrev_b32 v70, 16, v66", "v_and_b32 v71, 0xffff0000, v66")
        A("v_add_f32 v68, v68, v70", "v_add_f32 v69, v69, v71", "v_cvt_pk_bf16_f32 v64, v68, v69")
        A("s_mov_b64 exec, 0x00ff00ff", "buffer_store_dword v64, v11, s[44:47], s78 offen")
        C("workgroup 0 has seen data from every workgroup by now: leave this launch's tag for the next launch to step from")
        A("s_cmp_lg_u32 s2, 0", "s_cbranch_scc1 L_done")
        A("s_mov_b64 exec, 1", "v_mov_b32 v66, s52", "v_mov_b32 v67, s53", f"s_mov_b32 s3, {W_EPOCH}", "buffer_store_dwordx2 v[66:67], v11, s[28:31], s3 offen sc1")
        A("L_done:")
        if self.stamps:
            A("s_mov_b64 exec, -1")
            self.stamp("end")
            A("s_lshl_b32 s3, s2, 3", "s_add_u32 s3, s3, s54", "s_lshl_b32 s3, s3, 8", f"s_add_u32 s3, s3, {W_STAMP}",
              "v_and_b32 v1, 63, v0", "v_lshlrev_b32 v1, 2, v1", "buffer_store_dword v61, v1, s[28:31], s3 offen")
        A("L_end:", "s_endpgm")
        self.L += self.outl
        self.L += ['.section .rodata,"a"', ".p2align 6", f".amdhsa_kernel {K}",
                   "  .amdhsa_next_free_vgpr 256", "  .amdhsa_next_free_sgpr 102", "  .amdhsa_accum_offset 256",
                   "  .amdhsa_group_segment_fixed_size 0", "  .amdhsa_kernarg_size 112", "  .amdhsa_user_sgpr_count 2",
                   "  .amdhsa_user_sgpr_kernarg_segment_ptr 1", "  .amdhsa_system_sgpr_workgroup_id_x 1",
                   "  .amdhsa_float_denorm_mode_32 3", ".end_amdhsa_kernel"]
        if self.stamps: self.L.append("; STAMPS " + ",".join(self.snames) + " 0")
        return "\n".join(self.L) + "\n"

def emit(fn, **kw):
    open("exp/" + fn, "w").write(Gen(**kw).gen())

if __name__ == "__main__":
    o = dict(stamps=True, pollat=8, chkat=4, rc=(2,3,1,4,2), capfrom=6)
    emit("a_v26.s", capodd=40, cap=5, freeto=24, **o)
    emit("a_off.s", ad=(999, -999, 5, 3, 8), **o)
    emit("a_t16.s", ad=(16, -999, 5, 3, 8), **o)
    emit("a_t16z.s", ad=(16, 0, 5, 3, 8), **o)
    emit("a_t8.s", ad=(8, 0, 5, 3, 8), **o)
    emit("a_t16s2.s", ad=(16, 0, 5, 2, 6), **o)
    emit("a_t24.s", ad=(24, 8, 5, 3, 6), **o)
```
